```python
import torch

def _softmax(x, axis=-1):
    return torch.softmax(x, dim=axis)

def _gelu(x):
    return torch.nn.functional.gelu(x, approximate='tanh')

def _silu(x):
    return torch.nn.functional.silu(x)

def _sigmoid(x):
    return torch.sigmoid(x)

def _layernorm(x, axis=-1, eps=1e-05):
    m = x.mean(dim=axis, keepdim=True)
    v = x.var(dim=axis, keepdim=True, unbiased=False)
    return (x - m) / torch.sqrt(v + eps)

def _scatter_add(tgt, idx, src, axis=0):
    return tgt.clone().index_add_(axis, idx, src)

def _segment_sum(src, seg, n):
    out = torch.zeros((n,) + src.shape[1:], dtype=src.dtype)
    return out.index_add_(0, seg, src)

def _pad(x, pw):
    flat = tuple((v for pair in reversed(pw) for v in pair))
    return torch.nn.functional.pad(x, flat)
kernel_name = 'recurrent_scan__memory_aug_recurrent_mem_tr__dense_activation_squared_relu__prompt'

def setup_inputs():

    _w = lambda a: (lambda t: t.to(torch.bfloat16) if t.is_floating_point() else t)(torch.as_tensor(a))

    def _A_setup():
        B, S, Dm = (1, 2048, 640)
        H, Dh = (32, 128)
        M, seg = (8, 32)
        seg = min(seg, S)
        S = S // seg * seg
        return {'x': _w((lambda *s: torch.randn(*s, dtype=torch.bfloat16) * 0.05)(B, S, Dm)), 'mem0': _w((lambda *s: torch.randn(*s, dtype=torch.bfloat16) * 0.05)(B, M, Dm)), 'Wq': _w((lambda *s: torch.randn(*s, dtype=torch.bfloat16) * 1.6)(Dm, H, Dh) * Dm ** (-0.5)), 'Wk': _w((lambda *s: torch.randn(*s, dtype=torch.bfloat16) * 1.6)(Dm, H, Dh) * Dm ** (-0.5)), 'Wv': _w((lambda *s: torch.randn(*s, dtype=torch.bfloat16) * 0.05)(Dm, H, Dh) * Dm ** (-0.5)), 'Wo': _w((lambda *s: torch.randn(*s, dtype=torch.bfloat16) * 0.05)(H, Dh, Dm) * (H * Dh) ** (-0.5)), 'seg_len': seg}
    _A_in = _A_setup()

    def _B_setup():
        B, S, D, F = (1, 2048, 640, 1728)
        return {'x': _w((lambda *s: torch.randn(*s, dtype=torch.bfloat16) * 0.05)(B, S, D)), 'w1': _w((lambda *s: torch.randn(*s, dtype=torch.bfloat16) * 0.05)(D, F)), 'b1': _w((lambda *s: torch.randn(*s, dtype=torch.bfloat16) * 0.4)(F)), 'w2': _w((lambda *s: torch.randn(*s, dtype=torch.bfloat16) * 0.05)(F, D)), 'b2': _w((lambda *s: torch.randn(*s, dtype=torch.bfloat16) * 3.2)(D))}
    _B_in = _B_setup()
    return {'A_x': _A_in['x'], 'A_mem0': _A_in['mem0'], 'A_Wq': _A_in['Wq'], 'A_Wk': _A_in['Wk'], 'A_Wv': _A_in['Wv'], 'A_Wo': _A_in['Wo'], 'A_seg_len': _A_in['seg_len'], 'B_x': _B_in['x'], 'B_w1': _B_in['w1'], 'B_b1': _B_in['b1'], 'B_w2': _B_in['w2'], 'B_b2': _B_in['b2']}

def reference(A_x, A_mem0, A_Wq, A_Wk, A_Wv, A_Wo, A_seg_len, B_x, B_w1, B_b1, B_w2, B_b2):

    def _A_ref(x, mem0, Wq, Wk, Wv, Wo, seg_len):
        B, S, Dm = x.shape
        H, Dh = (Wq.shape[1], Wq.shape[2])
        M = mem0.shape[1]
        scale = Dh ** (-0.5)
        n_seg = S // seg_len
        L = M + seg_len
        idx = torch.arange(L)
        mask = (idx[:, None] < M) | (idx[:, None] >= idx[None, :])
        mem = mem0
        outs = []
        for s in range(n_seg):
            xs = x[:, s * seg_len:(s + 1) * seg_len, :].clone()
            h = torch.concatenate([mem, xs], axis=1)
            q = torch.einsum('btd,dhe->bhte', h, Wq)
            k = torch.einsum('btd,dhe->bhte', h, Wk)
            v = torch.einsum('btd,dhe->bhte', h, Wv)
            scores = torch.einsum('bhqe,bhke->bhqk', q, k) * scale
            scores = torch.where(mask[None, None], scores, -1000000000.0)
            p = _softmax(scores, axis=-1)
            o = torch.einsum('bhqk,bhke->bhqe', p, v)
            o = torch.einsum('bhte,hed->btd', o, Wo)
            mem = o[:, :M, :].clone()
            outs.append(o[:, M:, :])
        return torch.concatenate(outs, axis=1)

    def _B_ref(x, w1, b1, w2, b2):
        h = torch.einsum('bsd,df->bsf', x, w1) + b1
        zero = torch.zeros_like(h)
        r = torch.where(h > zero, h, zero)
        h = r * r
        out = torch.einsum('bsf,fd->bsd', h, w2) + b2
        return out
    x = A_x
    xn = _layernorm(x, axis=-1)
    s = _A_ref(xn, A_mem0, A_Wq, A_Wk, A_Wv, A_Wo, A_seg_len)
    g = _silu(_B_ref(xn, B_w1, B_b1, B_w2, B_b2))
    return x + s * g
```

```python
import re

class R:
    def __init__(s, f, i, n=1): s.f, s.i, s.n = f, i, n
    def __str__(s):
        return f"{s.f}{s.i}" if s.n == 1 else f"{s.f}[{s.i}:{s.i+s.n-1}]"
    def regs(s): return [f"{s.f}{s.i+k}" for k in range(s.n)]
    def __getitem__(s, k):
        if isinstance(k, slice):
            st = k.start or 0; en = k.stop if k.stop is not None else s.n
            return R(s.f, s.i+st, en-st)
        return R(s.f, s.i+k, 1)
def V(i, n=1): return R('v', i, n)
def A(i, n=1): return R('a', i, n)
def S(i, n=1): return R('s', i, n)

def regs_of(x):
    if isinstance(x, R): return x.regs()
    if isinstance(x, str):
        if x in ('vcc',): return ['vcc']
        if x in ('exec',): return ['exec']
        if x == 'm0': return ['m0']
        if x.startswith('-') or x.startswith('abs('):
            m = re.search(r'([vas])(\d+)', x)
            if m: return [m.group(0)]
        if re.fullmatch(r'[vas]\d+', x): return [x]
    return []

TRANS = ('v_exp_f32','v_log_f32','v_rcp_f32','v_rsq_f32','v_sqrt_f32','v_sin_f32','v_cos_f32')

class Ins:
    __slots__ = ('text','rd','wr','kind','passes','srcC','label','target','wide','pend','note')
    def __init__(s, text, rd=(), wr=(), kind='other', passes=0, srcC=(), label=None, target=None, wide=False):
        s.text, s.rd, s.wr, s.kind, s.passes, s.srcC = text, set(rd), set(wr), kind, passes, tuple(srcC)
        s.label, s.target, s.wide = label, target, wide

class Asm:
    def __init__(s): s.ins = []; s.out = s.ins
    def raw(s, text, **kw): i = Ins(text, **kw); s.out.append(i); return i
    def label(s, name): s.raw(f"{name}:", kind='label', label=name)
    def comment(s, t): return s.raw(f"; {t}", kind='comment')
    def _ops(s, ops): return ", ".join(str(o) for o in ops)
    def valu(s, op, *ops, ndst=1, mods='', rmw=False):
        wr = []; rd = []
        for o in ops[:ndst]: wr += regs_of(o)
        for o in ops[ndst:]: rd += regs_of(o)
        if rmw: rd += wr
        kind = 'trans' if op in TRANS else 'valu'
        if op.startswith('v_permlane'): kind = 'permlane'; rd += wr; wr += regs_of(ops[1])
        if op.startswith('v_readfirstlane') or op.startswith('v_readlane'): kind = 'readlane'
        if 'dpp' in mods or 'row_' in mods or 'quad_perm' in mods: kind = 'dpp'
        if op.startswith('v_cndmask') and len(ops) == 3: rd.append('vcc')
        rd.append('exec')
        return s.raw(f"{op} {s._ops(ops)}{(' '+mods) if mods else ''}", rd=rd, wr=wr, kind=kind)
    def salu(s, op, *ops, ndst=1):
        wr = []; rd = []
        for o in ops[:ndst]: wr += regs_of(o)
        for o in ops[ndst:]: rd += regs_of(o)
        return s.raw(f"{op} {s._ops(ops)}", rd=rd, wr=wr, kind='salu')
    def mfma(s, op, D, Aop, Bop, C, passes=4):
        rd = regs_of(Aop) + regs_of(Bop) + regs_of(C)
        return s.raw(f"{op} {D}, {Aop}, {Bop}, {C}", rd=rd, wr=regs_of(D), kind='mfma', passes=passes, srcC=regs_of(C))
    def smfmac(s, D, Aop, Bop, idx, op='v_smfmac_f32_16x16x64_bf16'):
        rd = regs_of(Aop) + regs_of(Bop) + regs_of(idx) + regs_of(D)
        return s.raw(f"{op} {D}, {Aop}, {Bop}, {idx}", rd=rd, wr=regs_of(D), kind='mfma', passes=4, srcC=regs_of(D))
    def ds_read(s, op, D, addr, off=0):
        return s.raw(f"{op} {D}, {addr}" + (f" offset:{off}" if off else ''), rd=regs_of(addr), wr=regs_of(D), kind='dsread')
    def ds_write(s, op, addr, D, off=0):
        return s.raw(f"{op} {addr}, {D}" + (f" offset:{off}" if off else ''), rd=regs_of(addr)+regs_of(D), kind='dswrite')
    def bload(s, op, D, voff, srd, soff, off=0, mods=''):
        t = f"{op} {D}, {voff}, {srd}, {soff} offen" + (f" offset:{off}" if off else '') + ((' '+mods) if mods else '')
        return s.raw(t, rd=regs_of(voff)+regs_of(srd)+regs_of(soff), wr=regs_of(D), kind='vmload')
    def bload_lds(s, op, voff, srd, soff, off=0, mods=''):
        t = f"{op} {voff}, {srd}, {soff} offen" + (f" offset:{off}" if off else '') + ((' '+mods) if mods else '') + " lds"
        return s.raw(t, rd=regs_of(voff)+regs_of(srd)+regs_of(soff)+['m0'], kind='vmdma')
    def bstore(s, op, D, voff, srd, soff, off=0, mods=''):
        t = f"{op} {D}, {voff}, {srd}, {soff} offen" + (f" offset:{off}" if off else '') + ((' '+mods) if mods else '')
        return s.raw(t, rd=regs_of(D)+regs_of(voff)+regs_of(srd)+regs_of(soff), kind='vmstore', wide=('x4' in op or 'x3' in op))
    def batomic(s, op, D, voff, srd, soff, off=0, ret=False, mods=''):
        t = f"{op} {D}, {voff}, {srd}, {soff} offen" + (f" offset:{off}" if off else '') + (' sc0' if ret else '') + ((' '+mods) if mods else '')
        return s.raw(t, rd=regs_of(D)+regs_of(voff)+regs_of(srd)+regs_of(soff), wr=regs_of(D) if ret else [], kind='vmload' if ret else 'vmstore')
    def wait(s, vm=None, lgkm=None):
        t = "s_waitcnt" + (f" vmcnt({vm})" if vm is not None else '') + (f" lgkmcnt({lgkm})" if lgkm is not None else '')
        i = s.raw(t, kind='wait'); i.note = (vm, lgkm); return i
    def barrier(s): return s.raw("s_barrier", kind='barrier')
    def nop(s, n=0): return s.raw(f"s_nop {n}", kind='nop', passes=n+1)
    def branch(s, op, target):
        rd = {'s_cbranch_vccz':['vcc'],'s_cbranch_vccnz':['vcc'],'s_cbranch_execz':['exec'],'s_cbranch_execnz':['exec']}.get(op, [])
        return s.raw(f"{op} {target}", rd=rd, kind='branch', target=target)
    def capture(s, fn):
        old = s.out; s.out = []; fn(); r = s.out; s.out = old; return r
    def put(s, lst): s.out.extend(lst)

    def auto_wait(s):
        out = []; vm = []; lg = []
        for i in s.ins:
            if i.kind in ('label',):
                vm = []; lg = []
            touched = i.rd | i.wr
            need_vm = None; need_lg = None
            if i.kind not in ('label','comment','wait','nop'):
                for k, d in enumerate(vm):
                    if d & touched: need_vm = len(vm) - 1 - k
                for k, d in enumerate(lg):
                    if d & touched: need_lg = len(lg) - 1 - k
            if need_vm is not None or need_lg is not None:
                if need_vm is not None and need_vm > 63: need_vm = 63
                if need_lg is not None and need_lg > 15: need_lg = 15
                t = "s_waitcnt" + (f" vmcnt({need_vm})" if need_vm is not None else '') + (f" lgkmcnt({need_lg})" if need_lg is not None else '')
                w = Ins(t, kind='wait'); out.append(w)
                if need_vm is not None: vm = vm[len(vm)-need_vm:] if need_vm else []
                if need_lg is not None: lg = lg[len(lg)-need_lg:] if need_lg else []
            if i.kind == 'wait':
                a, b = i.note
                if a is not None: vm = vm[len(vm)-a:] if a and a < len(vm) else ([] if not a else vm)
                if b is not None: lg = lg[len(lg)-b:] if b and b < len(lg) else ([] if not b else lg)
            if i.kind == 'vmload': vm.append(set(i.wr))
            elif i.kind in ('vmstore','vmdma'): vm.append(set())
            elif i.kind == 'dsread': lg.append(set(i.wr))
            elif i.kind == 'dswrite': lg.append(set())
            elif i.kind == 'smem': lg.append(set(i.wr)); lg.append(set(i.wr))
            out.append(i)
        s.ins = out; s.out = s.ins

    def _need(s, p, c):
        n = 0
        isv = lambda k: k in ('valu','trans','permlane','readlane','dpp')
        pw = p.wr;
        if isv(p.kind):
            vw = {r for r in pw if r[0] in 'va' and r != 'vcc'}
            sw = {r for r in pw if r[0] == 's' or r == 'vcc'}
            if c.kind == 'mfma' and vw & c.rd: n = max(n, 2)
            if c.kind == 'permlane' and vw & c.rd: n = max(n, 2)
            if c.kind == 'dpp' and vw & c.rd: n = max(n, 2)
            if c.kind == 'readlane' and vw & c.rd: n = max(n, 1)
            if p.kind == 'trans' and isv(c.kind) and c.kind != 'trans' and vw & (c.rd | c.wr): n = max(n, 1)
            if p.kind == 'trans' and c.kind in ('mfma','vmstore','dswrite') and vw & c.rd: n = max(n, 2)
            if sw:
                if isv(c.kind) and sw & c.rd: n = max(n, 4 if c.kind == 'readlane' else 2)
                if c.kind in ('vmload','vmstore','vmdma') and sw & c.rd: n = max(n, 5)
            if 'exec' in pw:
                if c.kind == 'dpp': n = max(n, 5)
                if c.kind in ('mfma','readlane','permlane'): n = max(n, 4)
        if p.kind == 'mfma':
            T = {4:(0,6,8,8,3), 8:(0,10,12,12,7), 2:(2,4,5,5,1), 16:(0,18,20,20,15)}[p.passes]
            D = pw
            if c.kind == 'mfma':
                cC = set(c.srcC); cAB = c.rd - cC
                if D & cC:
                    if D == cC and c.passes == p.passes and c.text.split()[0] == p.text.split()[0]: n = max(n, T[0])
                    else: n = max(n, T[1])
                ab = set()
                for r in c.rd:
                    if r not in cC: ab.add(r)
                if D & ab: n = max(n, T[2])
                if D & c.wr and not (D & cC): n = max(n, T[1])
            elif c.kind not in ('label','comment','nop','wait','branch','salu','barrier'):
                if D & (c.rd | c.wr): n = max(n, T[3])
            if isv(c.kind) and set(p.srcC) & c.wr: n = max(n, T[4])
        if p.kind == 'vmstore' and p.wide:
            data = {r for r in p.rd if r[0] in 'va'}
            if data & c.wr: n = max(n, 2 if isv(c.kind) else 1)
        if p.kind == 'salu' and 'm0' in pw and c.kind == 'vmdma': n = max(n, 1)
        return n
    def hazards(s):
        LOOK = 24
        src = s.ins
        ins = list(src)
        k = 0
        def index():
            labels = {i.label: n for n, i in enumerate(ins) if i.kind == 'label'}
            preds = {}
            for n, i in enumerate(ins):
                if i.kind == 'branch' and i.target in labels: preds.setdefault(labels[i.target], []).append(n)
            return preds
        preds = index()
        while k < len(ins):
            c = ins[k]
            if c.kind in ('label','comment','nop','wait'): k += 1; continue
            worst = 0
            stack = [(k-1, 0)]; seen = set()
            while stack:
                p, d = stack.pop()
                while p >= 0 and d < LOOK:
                    if (p, d) in seen: break
                    seen.add((p, d))
                    pi = ins[p]
                    if pi.kind == 'label':
                        for q in preds.get(p, []): stack.append((q, d))
                        p -= 1; continue
                    if pi.kind == 'comment': p -= 1; continue
                    if pi.text.startswith('s_endpgm'): break
                    need = s._need(pi, c)
                    if need - d > worst: worst = need - d
                    d += pi.passes if pi.kind == 'nop' else 1
                    p -= 1
            if worst > 0:
                ins.insert(k, Ins(f"s_nop {worst-1}", kind='nop', passes=worst))
                preds = index()
                k += 1
            k += 1
        s.ins = ins; s.out = s.ins
    def text(s):
        o = []
        for i in s.ins:
            o.append(i.text if i.kind in ('label','plabel') else "    " + i.text)
        return "\n".join(o) + "\n"

def weave(main, side, start=0, per=None):
    out = []; si = 0
    nm = max(1, len(main) - start)
    if per is None: per = -(-len(side) // nm)
    for k, m in enumerate(main):
        out.append(m)
        if k >= start:
            for _ in range(per):
                if si < len(side): out.append(side[si]); si += 1
    out.extend(side[si:])
    return out
```

```python
from asmlib import *
import os
EXP=os.environ.get('EXP','')
XN=0x0; KX=0x0400000; VX=0x1400000; QX=0x2400000; HF=0x3400000; OX=0x3C00000
KMV=0x4C20000; PB=0x5480000; MB=0x5500000; SW=0x5600000; FL=0x5A00000
WS_BYTES=268435456
LMEM=131072; LKX=LMEM+10240; LVX=LKX+8192; LQE=LVX+8192; LKE=LQE+2048; LVE=LKE+2048
sX=S(8,4); sM0=S(12,4); sWq=S(16,4); sWk=S(20,4); sWv=S(24,4); sWo=S(28,4); sW1=S(32,4); sB1=S(36,4)
sW2=S(40,4); sB2=S(44,4); sOUT=S(48,4); sDBG=S(52,4); sWS=S(56,4)
SRDS=[(sX,0,2621440),(sM0,8,10240),(sWq,16,5242880),(sWk,24,5242880),(sWv,32,5242880),(sWo,40,5242880),
      (sW1,64,2211840),(sB1,72,3456),(sW2,80,2211840),(sB2,88,1280),(sOUT,96,2621440),(sDBG,104,256),(sWS,112,WS_BYTES)]
sH=S(60); sW=S(61); sStep=S(62); sTag=S(63); sMask=S(64); sUnit=S(65); sRSoff=S(66); sMSToff=S(67)
sPst=[S(68+i) for i in range(5)]; sAG=[S(73+i) for i in range(5)]; sSW=S(78); sKXo=S(79); sKMVo=S(80); sVXo=S(81)
sHi=S(82,2); sMaskP=S(84); sBM=S(85); sT0=S(86); sT1=S(87); sT2=S(88); sT3=S(89); sC=S(90,2); sT4=S(92); sT5=S(93); sPubL=S(94); sPerm=S(95)
sSWb=[S(32+i) for i in range(6)]
sDM=[S(40+i) for i in range(4)]
vT=V(0); vWT=V(1); vMEMr=V(2); vFR=V(3); vQEr=V(4); vVEr=V(5); vQEw=V(6); vMWA=V(7); vMWB=V(8)
vPst=V(9); vJunk=V(10); vMst=V(14+47); vNEG=V(11); vL16=V(12); vIdx=V(13)
PB0=14
def P(i,n=1): return V(PB0+i,n)
WV0=PB0+82

SAFE=os.environ.get('SAFE','')=='1'
def guard(a):
    if SAFE:
        a.salu('s_add_u32',S(101),S(101),1); a.salu('s_cmp_gt_u32',S(101),0x300000,ndst=0); a.branch('s_cbranch_scc1','L_end')
def load_srds(a):
    for srd,off,n in SRDS:
        a.raw(f"s_load_dwordx2 {S(srd.i,2)}, s[0:1], {off}", wr=S(srd.i,2).regs(), kind='smem')
    a.wait(lgkm=0)
    for srd,off,n in SRDS:
        a.salu('s_and_b32', srd[1], srd[1], '0xffff')
        a.salu('s_mov_b32', srd[2], str(n))
        a.salu('s_mov_b32', srd[3], '0x00020000')

LDS_SLABS=[('q',1),('q',3),('q',5),('q',7),('q',9),('o',1,0),('o',2,0),('o',3,0)]
STREAM=[('k',1,1),('k',2,0),('k',2,1), ('k',5,0),('k',5,1),('k',6,0), ('k',9,0),('k',9,1),('v',9,1), ('o',4,0,1),('o',4,1,0),('o',4,1,1)]
ALL_SLABS=[(m,ks) for ks in range(10) for m in 'qk']+[('v',ks) for ks in range(10)]+[('o',i,k2) for i in range(5) for k2 in range(2)]
tile_loc={}
_res=[V(WV0+8*i,8) for i in range(20)]+[A(8*i,8) for i in range(32)]
_ri=0
for sl in ALL_SLABS:
    for ct in range(2):
        t=sl+(ct,)
        if sl in LDS_SLABS: tile_loc[t]=('lds',LDS_SLABS.index(sl)*2+ct)
        elif t in STREAM: tile_loc[t]=('str',STREAM.index(t))
        else: tile_loc[t]=('reg',_res[_ri]); _ri+=1
assert _ri==len(_res)==52, _ri

def chain_setup(a):
    L=P(0); g=P(1); n=P(2); t1=P(3); t2=P(4); t3=P(5); u=P(6)
    a.valu('v_and_b32',L,63,vT)
    a.valu('v_lshrrev_b32',t1,6,vT)
    a.valu('v_readfirstlane_b32',sW,t1)
    a.valu('v_lshrrev_b32',g,4,L)
    a.valu('v_and_b32',n,15,L)
    a.valu('v_lshlrev_b32',vL16,4,L)
    a.salu('s_lshl_b32',sT0,sW,15)
    a.valu('v_add_u32',vWT,sT0,vL16)
    a.valu('v_and_b32',t1,7,L); a.valu('v_xor_b32',t1,t1,g); a.valu('v_lshl_add_u32',t1,g,3,t1)
    a.valu('v_lshlrev_b32',t1,4,t1)
    a.valu('v_add_u32',vMEMr,LMEM,t1)
    a.valu('v_add_u32',vFR,LMEM,vL16)
    a.valu('v_lshrrev_b32',t1,2,L); a.valu('v_lshlrev_b32',t1,4,t1); a.valu('v_and_b32',t2,1,L); a.valu('v_lshl_add_u32',t1,t2,3,t1)
    a.valu('v_add_u32',vQEr,LQE,t1)
    g2=P(7); ct=P(8)
    a.valu('v_and_b32',g2,1,g); a.valu('v_lshrrev_b32',ct,1,g)
    a.valu('v_lshlrev_b32',t1,4,n); a.valu('v_lshl_add_u32',t1,g2,3,t1); a.valu('v_add_u32',vVEr,LVE,t1)
    a.valu('v_lshl_add_u32',t1,ct,8,t1)
    a.salu('s_lshl_b32',sT0,sW,9); a.salu('s_add_u32',sT0,sT0,LQE)
    a.valu('v_add_u32',vQEw,sT0,t1)
    rh=P(9); gg=P(10)
    a.valu('v_lshrrev_b32',u,1,vT); a.valu('v_and_b32',rh,1,vT)
    a.valu('v_bfe_u32',gg,u,1,2)
    a.valu('v_lshlrev_b32',t1,2,rh); a.valu('v_xor_b32',t1,t1,gg); a.valu('v_lshl_add_u32',t1,gg,3,t1)
    a.valu('v_lshlrev_b32',t1,4,t1)
    a.valu('v_lshrrev_b32',t2,3,u); a.valu('v_lshl_add_u32',t2,t2,9,t1)
    a.valu('v_and_b32',t3,1,u); a.valu('v_lshl_add_u32',t2,t3,3,t2)
    a.valu('v_add_u32',vMWA,LMEM,t2)
    a.valu('v_lshrrev_b32',t2,5,u); a.valu('v_add_u32',t2,16,t2); a.valu('v_lshl_add_u32',t2,t2,9,t1)
    a.valu('v_bfe_u32',L,u,3,2); a.valu('v_lshl_add_u32',t3,L,1,t3); a.valu('v_lshl_add_u32',t2,t3,1,t2)
    a.valu('v_add_u32',vMWB,LMEM,t2)
    a.valu('v_lshrrev_b32',t1,3,n); a.valu('v_lshl_add_u32',t1,ct,1,t1); a.valu('v_lshlrev_b32',t1,12,t1)
    a.valu('v_and_b32',t2,7,n); a.valu('v_lshl_add_u32',t1,t2,4,t1); a.valu('v_lshl_add_u32',vPst,g2,3,t1)
    a.valu('v_cmp_le_u32',sHi,8,n)
    a.valu('v_mov_b32',t1,'0x4444'); a.valu('v_mov_b32',t2,'0xeeee')
    a.valu('v_cndmask_b32',vIdx,t1,t2,sHi)
    a.valu('v_cmp_le_u32','vcc',1,ct); a.valu('v_mov_b32',t1,'0x10000'); a.valu('v_mov_b32',t2,'0xf149f2ca')
    a.valu('v_cndmask_b32',vNEG,t1,t2,'vcc')
    a.salu('s_lshl_b32',sUnit,sW,5); a.salu('s_add_u32',sUnit,sUnit,sH)
    a.salu('s_lshl_b32',sRSoff,sUnit,12); a.salu('s_add_u32',sRSoff,sRSoff,PB)
    a.salu('s_lshl_b32',sMSToff,sUnit,8); a.salu('s_add_u32',sMSToff,sMSToff,MB)
    a.salu('s_mul_i32',sT0,sW,5*16384); a.salu('s_lshl_b32',sT1,sH,7); a.salu('s_add_u32',sT0,sT0,sT1); a.salu('s_add_u32',sPst[0],sT0,PB)
    for i in range(1,5): a.salu('s_add_u32',sPst[i],sPst[i-1],16384)
    a.salu('s_lshl_b32',sT0,sW,10)
    for i in range(5): a.salu('s_add_u32',sAG[i],sT0,MB+4096*i)
    a.salu('s_lshl_b32',sT1,sW,9); a.salu('s_add_u32',sPubL,sT1,LKE)
    a.salu('s_lshl_b32',sT0,sH,2); a.salu('s_add_u32',sT0,sT0,sW); a.salu('s_lshl_b32',sT0,sT0,15); a.salu('s_add_u32',sSW,sT0,SW)
    for i in range(6): a.salu('s_add_u32',sSWb[i],sSW,4096*i)
    a.salu('s_lshl_b32',sT0,sH,13)
    a.salu('s_add_u32',sKXo,sT0,KX); a.salu('s_add_u32',sVXo,sT0,VX)
    a.salu('s_lshl_b32',sT0,sH,12); a.salu('s_lshl_b32',sT1,sW,9); a.salu('s_add_u32',sT0,sT0,sT1); a.salu('s_add_u32',sKMVo,sT0,KMV-32*4096)
    a.salu('s_mov_b32',sC[0],'0x3e0293ee'); a.salu('s_mov_b32',sC[1],'0x3e0293ee')
    a.salu('s_mov_b32',sStep,0)
    a.salu('s_mov_b32',sBM,'0x10001'); a.salu('s_mov_b32',sMaskP,1); a.salu('s_mov_b32',sPerm,'0x07060302')
    a.salu('s_mov_b32',sTag,2); a.salu('s_mov_b32',sMask,1)

def mk_mst(a):
    a.valu('v_and_b32',vMst,0xfff,vPst); a.valu('v_lshlrev_b32',vMst,1,vMst)
def chain_init_comm(a):
    one=P(0,4)
    a.valu('v_mov_b32',one[0],1); a.valu('v_mov_b32',one[1],1)
    for i in range(5): a.bstore('buffer_store_dwordx2',one[0:2],vPst,sWS,sPst[i],mods='sc1')
    a.salu('s_cmp_ge_u32',sUnit,80,ndst=0); a.branch('s_cbranch_scc1','L_ci_skip')
    for k in range(4): a.valu('v_mov_b32',P(4+k),2)
    mk_mst(a)
    a.bstore('buffer_store_dwordx4',P(4,4),vMst,sWS,sMSToff,mods='sc1')
    a.label('L_ci_skip')

def dma_kv(a):
    for k,(soff,base) in enumerate(((sKXo,LKX),(sVXo,LVX))):
        for hf in range(2):
            a.salu('s_mov_b32','m0',base+4096*hf)
            if hf: a.salu('s_add_u32',sT1,soff,4096)
            for j in range(4):
                a.bload_lds('buffer_load_dwordx4',vL16,sWS,sT1 if hf else soff,off=1024*j,mods='sc1')
def publish(a,tmp):
    if 'nopub' in EXP: return
    a.valu('v_and_b32',vT,0x1f0,vL16); a.valu('v_and_b32',tmp[0],0x200,vL16); a.valu('v_lshl_add_u32',vT,tmp[0],2,vT)
    a.valu('v_add_u32',tmp[0],sPubL,vT)
    a.ds_read('ds_read_b128',tmp,tmp[0])
    a.bstore('buffer_store_dwordx4',tmp,vT,sWS,sKMVo,mods='sc1')
def prefetch_kv(a,tmp):
    if 'nopf' in EXP: return
    a.valu('v_lshlrev_b32',vT,3,vL16)
    a.salu('s_add_u32',sT1,sKXo,32*8192); a.salu('s_add_u32',sT2,sVXo,32*8192)
    a.salu('s_bitcmp0_b32',sW,0,ndst=0); a.salu('s_cselect_b32',sT1,sT1,sT2)
    a.bload('buffer_load_dword',tmp,vT,sWS,sT1,mods='sc1')

def chain_load_weights(a):
    vq=P(0); vo=P(1); ta=P(2); tb=P(3); tc=P(4); L=P(5); gB=P(6); r=P(7); c=P(8); t1=P(9); t2=P(10)
    a.valu('v_and_b32',L,63,vT); a.valu('v_lshrrev_b32',gB,4,L); a.valu('v_bfe_u32',r,L,2,2); a.valu('v_and_b32',c,3,L)
    a.valu('v_lshrrev_b32',t1,2,L); a.valu('v_lshlrev_b32',t2,4,c)
    a.valu('v_lshl_add_u32',vq,t1,13,t2)
    a.salu('s_movk_i32',sT0,1280); a.valu('v_mul_lo_u32',t1,t1,sT0); a.valu('v_add_u32',vo,t1,t2)
    a.salu('s_lshl_b32',sT0,sW,15)
    r0=P(11); r1=P(12); b0=P(13); b1=P(14)
    a.valu('v_and_b32',r0,1,r); a.valu('v_lshrrev_b32',r1,1,r); a.valu('v_and_b32',b0,1,gB); a.valu('v_lshrrev_b32',b1,1,gB)
    cp=P(15)
    a.valu('v_lshlrev_b32',cp,3,c); a.valu('v_lshl_add_u32',cp,r1,5,cp); a.valu('v_add_u32',cp,sT0,cp)
    a.valu('v_lshl_add_u32',t1,r0,4,gB); a.valu('v_lshl_add_u32',ta,t1,6,cp)
    a.valu('v_lshl_add_u32',t1,b0,4,r0); a.valu('v_lshl_add_u32',t1,b1,1,t1); a.valu('v_lshl_add_u32',tb,t1,6,cp)
    a.valu('v_lshl_add_u32',t1,b0,4,r0); a.valu('v_lshl_add_u32',t1,b1,2,t1); a.valu('v_lshl_add_u32',tc,t1,6,cp)
    a.salu('s_lshl_b32',sT2,sH,8); a.salu('s_lshl_b32',sT1,sW,6); a.salu('s_add_u32',sT2,sT2,sT1)
    a.salu('s_mul_i32',sT3,sH,163840); a.salu('s_mul_i32',sT1,sW,320); a.salu('s_add_u32',sT3,sT3,sT1)
    a.salu('s_lshl_b32',sT4,sW,15)
    order=[s for s in ALL_SLABS if s not in LDS_SLABS]+LDS_SLABS
    def slot_of(n): return (n%8) if n<32 else (n-32)
    def issue(n):
        sl=order[n]; slot=slot_of(n)
        for j in range(4):
            a.salu('s_add_u32','m0',sT4,slot*4096+j*1024)
            if sl[0]=='o':
                _,i,k2=sl
                a.salu('s_add_u32',sT5,sT3,(64*k2+16*j)*1280+i*64)
                a.bload_lds('buffer_load_dwordx4',vo,sWo,sT5)
            else:
                m,ks=sl
                d0=(128*j+16*ks) if ks<8 else (512+64*(ks-8)+16*j)
                a.salu('s_add_u32',sT5,sT2,d0*8192)
                a.bload_lds('buffer_load_dwordx4',vq,{'q':sWq,'k':sWk,'v':sWv}[m],sT5)
    tmp=[P(16,8),P(24,8),P(32,8),P(40,8)]
    DEPTH=7
    for n in range(DEPTH): issue(n)
    pend=[]
    for n in range(DEPTH): pend += [n]*4
    for n in range(len(order)):
        sl=order[n]; slot=slot_of(n)
        last=max(k for k,x in enumerate(pend) if x==n)
        a.wait(vm=min(63,len(pend)-1-last)); pend=pend[last+1:]
        if sl[0]=='o': addr=tc; imm=lambda ip,ct:(32*ct+8*(ip//2)+2*(ip%2))*64
        elif sl[1]<8: addr=ta; imm=lambda ip,ct:(32*(ip%2)+4*(ip//2)+8*ct)*64
        else: addr=tb; imm=lambda ip,ct:(32*ct+8*(ip%2)+4*(ip//2))*64
        dst=[]
        for ct in range(2):
            loc=tile_loc[sl+(ct,)]
            d=loc[1] if loc[0]=='reg' else tmp[(2*n+ct)%4]
            dst.append(d)
            for ip in range(4):
                a.ds_read('ds_read_b64_tr_b16',d[2*ip:2*ip+2],addr,slot*4096+imm(ip,ct))
        a.wait(lgkm=0)
        for ct in range(2):
            loc=tile_loc[sl+(ct,)]
            if loc[0]=='str':
                for hf in range(2):
                    a.salu('s_add_u32',sT5,sSW,loc[1]*2048+hf*1024)
                    a.bstore('buffer_store_dwordx4',dst[ct][4*hf:4*hf+4],vL16,sWS,sT5); pend.append('s')
            elif loc[0]=='lds':
                for hf in range(2):
                    a.ds_write('ds_write_b128',vWT,dst[ct][4*hf:4*hf+4],loc[1]*2048+hf*1024)
        if n+DEPTH<len(order):
            issue(n+DEPTH); pend += [n+DEPTH]*4
    a.wait(vm=0,lgkm=0)

def stage_mem(a, G):
    t=P(20,8); ad=P(28,4); bd=P(32,4)
    for r in range(4):
        a.valu('v_perm_b32',t[2*r],G[4*1+r],G[4*0+r],sPerm)
        a.valu('v_perm_b32',t[2*r+1],G[4*3+r],G[4*2+r],sPerm)
        a.ds_write('ds_write_b64',vMWA if r==0 else ad[r],t[2*r:2*r+2])
        a.ds_write('ds_write_b16_d16_hi',vMWB if r==0 else bd[r],G[16+r])
def stage_addr(a):
    ad=P(28,4); bd=P(32,4)
    for r in range(1,4):
        a.valu('v_xor_b32',ad[r],16*r,vMWA); a.valu('v_xor_b32',bd[r],16*r,vMWB)

def stream_load(a,tile,dst):
    if 'nostream' in EXP: return
    idx=tile_loc[tile][1]
    if 'mod' in EXP: idx=idx%int(EXP.split('mod')[1].split('_')[0])
    for hf in range(2):
        a.bload('buffer_load_dwordx4',dst[4*hf:4*hf+4],vL16,sWS,sSWb[idx//2],off=(idx%2)*2048+hf*1024)
def lds_load(a,tile,dst):
    idx=tile_loc[tile][1]
    for hf in range(2): a.ds_read('ds_read_b128',dst[4*hf:4*hf+4],vWT,idx*2048+hf*1024)

def merge_pair(a,D0,D1,out):
    for r in range(4): a.valu('v_permlane32_swap_b32',D0[r],D1[r])
    for r in range(0,4,2): a.valu('v_pk_add_f32',out[r:r+2],D0[r:r+2],D1[r:r+2])
def zero(a,R_):
    for k in range(0,R_.n,2): a.valu('v_mov_b64',R_[k:k+2],0)
def xlane(a,op,x,tmp):
    a.valu('v_mov_b32',tmp,x); a.valu('v_permlane32_swap_b32',x,tmp); a.valu(op,x,x,tmp)
    a.valu('v_mov_b32',tmp,x); a.valu('v_permlane16_swap_b32',x,tmp); a.valu(op,x,x,tmp)

def batch1(a):
    X=[P(52+8*i,8) for i in range(3)]
    for n_ in range(3): stream_load(a,STREAM[n_],X[n_])

def chain_loop(a, st, tagname, D1=0, D2=0, fs=lambda a,k:None, post_pub=None, pre_dma=None):
    lb=lambda n:f"L_{tagname}_{n}"
    acc={'q':P(76,4),'k':P(4,4),'v':P(8,4)}
    acc={'q':P(0,4),'k':P(4,4),'v':P(8,4)}
    Ar=[P(12+4*i,4) for i in range(6)]; LL=[P(36,8),P(44,8)]; X=[P(52+8*i,8) for i in range(3)]
    KXo=LKX-LMEM; VXo=LVX-LMEM
    def trfrag(D,base,k4):
        for hh in range(2): a.ds_read('ds_read_b64_tr_b16',D[2*hh:2*hh+2],vQEr,base+512*k4+256*hh)
    a.label(lb('top'))
    zero(a,P(0,12))
    a.wait(lgkm=0); a.barrier()
    fs(a,0)
    if 'commonly' in EXP:
        a.salu('s_cmp_eq_u32',sStep,63,ndst=0); a.branch('s_cbranch_scc1',lb('exit'))
        for i in range(5):
            a.valu('v_bfi_b32',P(48),sBM,vNEG,P(48))
            a.bstore('buffer_store_dwordx2',P(48,2),vPst,sWS,sPst[i],mods=st)
        for k in range(1,11): fs(a,k)
        a.branch('s_branch',lb('skip'))
    for k in range(6): a.ds_read('ds_read_b128',Ar[k],vMEMr,k*512)
    lds_load(a,('q',1,0),LL[0]); lds_load(a,('q',1,1),LL[1])
    first_str=[True]
    def tile_op(m,ka):
        t=(m,ka//2,ka%2); loc=tile_loc[t]
        if loc[0]=='reg': B=loc[1]
        elif loc[0]=='lds': B=LL[ka%2]
        else:
            B=X[loc[1]%3]
            if loc[1]<3 and first_str[0]:
                a.wait(vm=0); first_str[0]=False
        a.smfmac(acc[m],Ar[ka%6],B,vIdx)
        if loc[0]=='lds' and ka+4<20: lds_load(a,('q',(ka+4)//2,ka%2),LL[ka%2])
        if loc[0]=='str' and loc[1]+3<9: stream_load(a,STREAM[loc[1]+3],X[loc[1]%3])
    for ka in range(20):
        tile_op('q',ka); tile_op('k',ka)
        if ka<14:
            tile_op('v',ka)
            a.ds_read('ds_read_b128',Ar[ka%6],vMEMr,(ka+6)*512)
        if ka in (0,9,19): fs(a,{0:1,9:2,19:3}[ka])
        if ka==13:
            publish(a,P(76,4))
            if post_pub: post_pub(a)
            a.salu('s_add_u32',sKMVo,sKMVo,32*4096)
            prefetch_kv(a,vJunk)
    KFx={(T,k4):P(36+4*(2*k4+T-1),4) for k4 in range(4) for T in (1,2)}
    def kfx(T,k4): a.ds_read('ds_read_b128',KFx[(T,k4)],vFR,KXo+((T-1)*4+k4)*1024)
    tile_op('v',14)
    kfx(1,0); kfx(2,0)
    tile_op('v',15)
    for m,off in (('q',0),('k',2048)):
        q_=acc[m]
        a.valu('v_cvt_pk_bf16_f32',q_[0],q_[0],q_[1]); a.valu('v_cvt_pk_bf16_f32',q_[1],q_[2],q_[3])
        a.ds_write('ds_write_b64',vQEw,q_[0:2],off)
    kfx(1,1); kfx(2,1); kfx(1,2); kfx(2,2)
    fs(a,4)
    a.wait(lgkm=4); a.barrier()
    fs(a,5)
    QF=[P(0,4),P(4,4),P(76,4),P(64,4)]
    QF=[P(0,4),P(4,4),P(76,4),P(72,4)]
    KF0=[Ar[(14+k)%6] for k in range(4)]
    Sacc=[KFx[(1,0)],Ar[18%6],Ar[19%6]]
    trfrag(QF[0],0,0); trfrag(QF[1],0,1); trfrag(KF0[0],2048,0); trfrag(KF0[1],2048,1)
    tile_op('v',16)
    trfrag(QF[2],0,2); trfrag(KF0[2],2048,2); kfx(1,3); kfx(2,3)
    tile_op('v',17)
    trfrag(KF0[3],2048,3)
    tile_op('v',18); tile_op('v',19)
    trfrag(QF[3],0,3)
    fs(a,6)
    order=[(T,k4) for k4 in range(4) for T in (1,2)]
    VXF=[KFx[o] for o in order[1:]]+[P(68,4)]
    a.ds_read('ds_read_b128',VXF[7],vFR,VXo+7*1024)
    nvx=0
    v_=acc['v']
    for (T,k4) in order:
        a.mfma('v_mfma_f32_16x16x32_bf16',Sacc[T],KFx[(T,k4)],QF[k4],Sacc[T] if k4 else '0')
        if (T,k4)==(1,0):
            for k in range(4): a.valu('v_mov_b32',Sacc[0][k],vNEG)
        else:
            a.ds_read('ds_read_b128',VXF[nvx],vFR,VXo+nvx*1024); nvx+=1
        if (T,k4)==(1,1):
            a.valu('v_cvt_pk_bf16_f32',v_[0],v_[0],v_[1]); a.valu('v_cvt_pk_bf16_f32',v_[1],v_[2],v_[3])
            a.ds_write('ds_write_b64',vQEw,v_[0:2],4096)
    for k4 in range(4): a.mfma('v_mfma_f32_16x16x32_bf16',Sacc[0],KF0[k4],QF[k4],Sacc[0])
    fs(a,7)
    X3=[P(20,8),P(28,8),P(72,8)]
    OS=STREAM[9:]
    Px=P(8,4); Pm=P(80,2); mx=P(80); tm=P(81)
    s_=[Sacc[T][r] for T in range(3) for r in range(4)]
    a.valu('v_max3_f32',mx,s_[4],s_[5],s_[6]); a.valu('v_max3_f32',tm,s_[7],s_[8],s_[9])
    a.valu('v_max3_f32',mx,mx,s_[10],s_[11])
    a.wait(lgkm=0); a.barrier()
    a.salu('s_cmp_eq_u32',sStep,63,ndst=0); a.branch('s_cbranch_scc1',lb('last'))
    VE=[P(0,2),P(2,2),P(4,2),P(6,2),VXF[0][0:2],VXF[0][2:4],VXF[1][0:2],VXF[1][2:4]]
    for et in range(4): a.ds_read('ds_read_b64',VE[et],vVEr,et*256)
    a.valu('v_max3_f32',tm,tm,s_[0],s_[1])
    a.valu('v_max3_f32',mx,mx,s_[2],s_[3]); a.valu('v_max_f32',mx,mx,tm)
    a.valu('v_mov_b32',tm,mx); stream_load(a,OS[0],X3[0]); a.valu('v_permlane32_swap_b32',mx,tm); a.valu('v_max_f32',mx,mx,tm)
    a.valu('v_mov_b32',tm,mx); stream_load(a,OS[1],X3[1]); a.valu('v_permlane16_swap_b32',mx,tm); a.valu('v_max_f32',mx,mx,tm)
    a.valu('v_mul_f32',mx,sC[0],mx)
    for T in range(3):
        for h2 in range(2): a.valu('v_pk_fma_f32',Sacc[T][2*h2:2*h2+2],Sacc[T][2*h2:2*h2+2],sC,P(80,2),mods='op_sel_hi:[1,1,0] neg_lo:[0,0,1] neg_hi:[0,0,1]')
    for x in s_: a.valu('v_exp_f32',x,x)
    sm=Px[0:2]; rs=Px[2:4]
    a.valu('v_pk_add_f32',sm,Sacc[0][0:2],Sacc[0][2:4])
    for T in (1,2):
        a.valu('v_pk_add_f32',sm,sm,Sacc[T][0:2]); a.valu('v_pk_add_f32',sm,sm,Sacc[T][2:4])
    a.valu('v_add_f32',sm[0],sm[0],sm[1])
    a.valu('v_mov_b32',tm,sm[0]); stream_load(a,OS[2],X3[2]); a.valu('v_permlane32_swap_b32',sm[0],tm); a.valu('v_add_f32',sm[0],sm[0],tm)
    a.valu('v_mov_b32',tm,sm[0]); a.valu('v_permlane16_swap_b32',sm[0],tm); a.valu('v_add_f32',sm[0],sm[0],tm)
    a.valu('v_rcp_f32',rs[0],sm[0])
    for T in (1,2,0):
        for h2 in range(2): a.valu('v_pk_mul_f32',Sacc[T][2*h2:2*h2+2],Sacc[T][2*h2:2*h2+2],rs,mods='op_sel_hi:[1,0]')
    for T,o in ((1,0),(2,2)):
        for h2 in range(2): a.valu('v_cvt_pk_bf16_f32',Px[o+h2],Sacc[T][2*h2],Sacc[T][2*h2+1])
    for h2 in range(2): a.valu('v_cvt_pk_bf16_f32',Pm[h2],Sacc[0][2*h2],Sacc[0][2*h2+1])
    fs(a,8)
    O=[Sacc[1],Sacc[2],Sacc[0]]+[VXF[k] for k in range(2,7)]
    for et in range(8):
        a.mfma('v_mfma_f32_16x16x32_bf16',O[et],VXF[et],Px,'0')
        if et<2:
            a.ds_read('ds_read_b64',VE[4+2*et],vVEr,(4+2*et)*256); a.ds_read('ds_read_b64',VE[5+2*et],vVEr,(5+2*et)*256)
    fs(a,9)
    def cvt(et):
        d=O[et&~1]; o=2*(et&1)
        a.valu('v_cvt_pk_bf16_f32',d[o],O[et][0],O[et][1]); a.valu('v_cvt_pk_bf16_f32',d[o+1],O[et][2],O[et][3])
    A2=[O[0],O[2],O[4],O[6]]
    oacc=[Px,O[1],O[3],O[5],O[7]]
    LO=[P(0,8),R('v',VXF[0].i,8)]
    for et in range(8):
        a.mfma('v_mfma_f32_16x16x16_bf16',O[et],VE[et],Pm,O[et])
        if et==0: zero(a,Px)
        if et>=3: cvt(et-3)
        if et==4:
            lds_load(a,('o',1,0,0),LO[0])
    lds_load(a,('o',1,0,1),LO[1])
    fs(a,10)
    a.barrier()
    def fin(i):
        c=oacc[i]
        a.valu('v_cvt_pk_bf16_f32',c[0],c[0],c[1]); a.valu('v_cvt_pk_bf16_f32',c[1],c[2],c[3])
        a.valu('v_bfi_b32',c[0],sBM,vNEG,c[0])
        a.bstore('buffer_store_dwordx2',c[0:2],vPst,sWS,sPst[i],mods=st)
    for i in range(5):
        for k2 in range(2):
            for c2 in range(2):
                t=('o',i,k2,c2); loc=tile_loc[t]
                B=loc[1] if loc[0]=='reg' else (LO[c2] if loc[0]=='lds' else X3[OS.index(t)])
                a.smfmac(oacc[i],A2[2*k2+c2],B,vIdx)
                if loc[0]=='lds' and i+1<=3: lds_load(a,('o',i+1,0,c2),LO[c2])
                n_=2*k2+c2
                if i==0:
                    if n_==0: cvt(5)
                    if n_==1: cvt(6); cvt(7)
                    if n_==2: zero(a,O[1])
                    if n_==3: zero(a,O[3])
                if i==1 and n_==0: zero(a,O[5])
                if i==1 and n_==1: zero(a,O[7])
                if i>=1 and n_==2: fin(i-1)
    fin(4)
    a.label(lb('skip'))
    fs(a,11)
    a.salu('s_add_u32',sStep,sStep,1)
    a.salu('s_add_u32',sKXo,sKXo,32*8192); a.salu('s_add_u32',sVXo,sVXo,32*8192)
    a.valu('v_xor_b32',vNEG,sBM,vNEG)
    a.salu('s_cmp_ge_u32',sUnit,80,ndst=0); a.branch('s_cbranch_scc1',lb('ag0'))
    Sel=P(40,4); m_=P(44); one=P(45)
    mk_mst(a)
    a.valu('v_lshrrev_b32',m_,4,vL16); a.valu('v_and_b32',m_,15,m_)
    a.valu('v_and_b32',one,1,m_); a.valu('v_lshlrev_b32',one,4,one)
    a.valu('v_mov_b32',P(46),'0x3f80'); a.valu('v_lshlrev_b32',one,one,P(46))
    a.valu('v_lshrrev_b32',m_,1,m_)
    for k in range(4):
        a.valu('v_cmp_eq_u32','vcc',k,m_); a.valu('v_cndmask_b32',Sel[k],0,one,'vcc')
    if D1: a.raw(f"s_sleep {D1}")
    G=[P(4*i,4) for i in range(4)]
    a.label(lb('rs'))
    guard(a)
    if 'cnt' in EXP: a.salu('s_add_u32',S(4),S(4),1)
    for i in range(4): a.bload('buffer_load_dwordx4',G[i],vL16,sWS,sRSoff,off=1024*i,mods='sc1')
    x=P(64); D=P(16,4)
    a.valu('v_or3_b32',x,G[0][0],G[0][2],G[1][0]); a.valu('v_or3_b32',x,x,G[1][2],G[2][0])
    a.valu('v_or3_b32',x,x,G[2][2],G[3][0]); a.valu('v_or_b32',x,x,G[3][2])
    a.valu('v_and_b32',x,sMaskP,x); a.valu('v_cmp_ne_u32','vcc',0,x)
    for i in range(4): a.mfma('v_mfma_f32_16x16x32_bf16',D,Sel,G[i],D if i else '0')
    a.branch('s_cbranch_vccnz',lb('rs'))
    for k in range(4): a.valu('v_add_f32',D[k],D[k],D[k],mods='row_ror:8 row_mask:0xf bank_mask:0xf')
    for k in range(4): a.valu('v_cvt_pk_bf16_f32',D[k],0,D[k])
    a.valu('v_or_b32',D[0],sMask,D[0])
    a.salu('s_mov_b64','exec','0x00ff00ff')
    a.bstore('buffer_store_dwordx4',D,vMst,sWS,sMSToff,mods=st)
    a.salu('s_mov_b64','exec',-1)
    fs(a,12)
    a.salu('s_mov_b32',sT0,sTag); a.salu('s_mov_b32',sTag,sMask); a.salu('s_mov_b32',sMask,sT0)
    a.salu('s_xor_b32',sMaskP,sMaskP,sBM)
    stage_addr(a)
    if D2: a.raw(f"s_sleep {D2}")
    a.branch('s_branch',lb('ag'))
    a.label(lb('ag0'))
    a.salu('s_mov_b32',sT0,sTag); a.salu('s_mov_b32',sTag,sMask); a.salu('s_mov_b32',sMask,sT0)
    a.salu('s_xor_b32',sMaskP,sMaskP,sBM)
    stage_addr(a)
    a.salu('s_cmp_lg_u32',sW,3,ndst=0); a.branch('s_cbranch_scc1',lb('ag1'))
    if pre_dma: pre_dma(a)
    if 'nodma' not in EXP: dma_kv(a)
    a.branch('s_branch',lb('ag'))
    a.label(lb('ag1'))
    if D1+D2: a.raw(f"s_sleep {D1+D2+6}")
    a.label(lb('ag'))
    guard(a)
    if 'cnt' in EXP: a.salu('s_add_u32',S(5),S(5),1)
    G=P(0,20)
    for i in range(5): a.bload('buffer_load_dwordx4',G[4*i:4*i+4],vL16,sWS,sAG[i],mods='sc1')
    x=P(76)
    a.valu('v_or3_b32',x,G[0],G[4],G[8]); a.valu('v_or3_b32',x,x,G[12],G[16])
    a.valu('v_and_b32',x,sMask,x); a.valu('v_cmp_ne_u32','vcc',0,x)
    a.branch('s_cbranch_vccnz',lb('ag'))
    fs(a,13)
    stage_mem(a,G)
    batch1(a)
    a.branch('s_branch',lb('top'))
    a.label(lb('last'))
    publish(a,P(76,4))
    if post_pub: post_pub(a)
    a.label(lb('exit'))

def chain_first(a):
    G=P(0,20); u=P(64); rh=P(65); off=P(66)
    a.valu('v_lshrrev_b32',u,1,vT); a.valu('v_and_b32',rh,1,vT)
    a.salu('s_movk_i32',sT0,4*1280); a.valu('v_mul_lo_u32',off,rh,sT0); a.valu('v_lshl_add_u32',off,u,1,off)
    for k in range(20): a.valu('v_mov_b32',G[k],0)
    for r in range(4):
        a.salu('s_movk_i32',sT1,r*1280)
        for i in range(5):
            a.bload('buffer_load_short_d16_hi',G[4*i+r],off,sM0,sT1,off=i*256).rd |= set(G[4*i+r].regs())
    a.wait(vm=0)
    stage_addr(a)
    stage_mem(a,G)
    batch1(a)
```

```python
from chain import *
D_CHT=0; D_CHBAR=1; D_TASK=2; D_ARR=3; D_XM=4; D_FIN=5
D_RB=16
D_AT=32
D_PROG=48
F_LN=0; F_KV=4; F_Q=10; F_H=16
sTask=S(60); sWv_=S(61); sA=S(62); sB=S(63); sCn=S(64); sD=S(65); sE=S(66); sF=S(67)
sWo_=S(68); sAo=S(69); sK=S(70); sOut=S(71); sRB=S(72); sG=S(73); sLB=S(74); sRow=S(75); sI=S(76); sJ=S(77)
sWo2=S(78); sAst=S(79)
pL16=V(1); pW0=V(2); pW1=V(3); pTR=[V(4+i) for i in range(8)]; pT=[V(12+i) for i in range(12)]
pLane=V(24); pG=V(25); pN=V(26)
WFb=28
AFb=92
def WF(b,ct): return V(WFb+32*b+4*ct,4)
def AF(b,tt): return V(AFb+32*b+4*tt,4)
def ACC(ct,tt,NT): return A(4*(ct*NT+tt),4)

def par_setup(a):
    a.valu('v_and_b32',pLane,63,vT)
    a.valu('v_lshrrev_b32',pT[0],6,vT); a.valu('v_readfirstlane_b32',sWv_,pT[0])
    a.valu('v_lshlrev_b32',pL16,4,pLane)
    a.valu('v_lshrrev_b32',pG,4,pLane); a.valu('v_and_b32',pN,15,pLane)
    a.salu('s_lshl_b32',sLB,sWv_,15)
    a.valu('v_lshrrev_b32',pT[0],2,pLane); a.valu('v_and_b32',pT[1],7,pT[0]); a.valu('v_and_b32',pT[2],3,pLane)
    a.valu('v_lshlrev_b32',pT[0],8,pT[0]); a.valu('v_lshl_add_u32',pT[0],pT[1],5,pT[0]); a.valu('v_lshl_add_u32',pT[0],pT[2],3,pT[0])
    for ct in range(8):
        a.valu('v_xor_b32',pT[1],32*ct,pT[0]); a.valu('v_add_u32',pTR[ct],sLB,pT[1])

def set_wstride(a,rs):
    a.salu('s_mov_b32',sA,rs)
    a.valu('v_mul_lo_u32',pT[0],pG,sA)
    for j,dst in ((0,pW0),(1,pW1)):
        a.valu('v_lshlrev_b32',pT[1],1,pG);
        if j: a.valu('v_add_u32',pT[1],8,pT[1])
        a.valu('v_xor_b32',pT[1],pT[1],pN); a.valu('v_lshl_add_u32',dst,pT[1],4,pT[0])

def gemm_core(a,name,NT,srdW,rs,nk,formT=True,act_stride=None,zero_acc=True):
    if zero_acc:
        for r in range(0,32*NT): a.valu('v_accvgpr_write_b32',A(r),0)
    def dma(slot):
        for j in range(8):
            a.salu('s_add_u32','m0',sLB,slot*8192+j*1024)
            a.salu('s_add_u32',sA,sWo_,4*j*rs)
            a.bload_lds('buffer_load_dwordx4',pW1 if j&1 else pW0,srdW,sA)
        a.salu('s_add_u32',sWo_,sWo_,32*rs)
    def act(b):
        a.salu('s_mov_b32',sB,sAo)
        for tt in range(NT):
            a.bload('buffer_load_dwordx4',AF(b,tt),pL16,sWS,sB,mods='sc1')
            if tt+1<NT: a.salu('s_add_u32',sB,sB,sAst)
        a.salu('s_add_u32',sAo,sAo,1024)
    def trs(b,slot):
        for ct in range(8):
            for hh in range(2): a.ds_read('ds_read_b64_tr_b16',WF(b,ct)[2*hh:2*hh+2],pTR[ct],slot*8192+hh*4096)
    dma(0); act(0); dma(1); act(1); dma(2)
    a.wait(vm=2*NT+16 if 2*NT+16<64 else 63); trs(0,0)
    a.salu('s_mov_b32',sK,0)
    a.label(f'L_{name}_loop')
    for u in range(4):
        a.wait(vm=8+ (NT if False else 0) + 0 if False else 8+NT-NT+0, lgkm=0) if False else None
        a.wait(vm=NT+8,lgkm=0)
        def mm():
            for ct in range(8):
                for tt in range(NT):
                    if formT: a.mfma('v_mfma_f32_16x16x32_bf16',ACC(ct,tt,NT),WF(u%2,ct),AF(u,tt),ACC(ct,tt,NT))
                    else: a.mfma('v_mfma_f32_16x16x32_bf16',ACC(ct,tt,NT),AF(u,tt),WF(u%2,ct),ACC(ct,tt,NT))
        def side():
            trs((u+1)%2,(u+1)%4); act((u+2)%4); dma((u+3)%4)
        m_=a.capture(mm); s_=a.capture(side)
        a.put(weave(m_,s_,per=max(1,-(-len(s_)//max(1,len(m_)-2)))))
    a.salu('s_add_u32',sK,sK,4); a.salu('s_cmp_lt_u32',sK,nk,ndst=0); a.branch('s_cbranch_scc1',f'L_{name}_loop')
    a.wait(vm=0,lgkm=0)
    a.nop(7); a.nop(7)

def rd_acc(a,dst,q):
    for r in range(4): a.valu('v_accvgpr_read_b32',dst[r],q[r])

uid=[0]
def signal(a,dw,val):
    uid[0]+=1; l=f'L_sig{uid[0]}'
    a.wait(vm=0); a.barrier()
    a.salu('s_cmp_lg_u32',sWv_,0,ndst=0); a.branch('s_cbranch_scc1',l)
    a.valu('v_mov_b32',pT[0],val); a.valu('v_mov_b32',pT[1],0)
    a.salu('s_mov_b64','exec',1)
    a.batomic('buffer_atomic_add',pT[0],pT[1],sDBG,dw,mods='sc1')
    a.salu('s_mov_b64','exec',-1)
    a.label(l)
def wait_field(a,dw,shift_s,mask,need):
    uid[0]+=1; l=f'L_wf{uid[0]}'; l2=l+'d'
    a.valu('v_mov_b32',pT[1],0)
    a.label(l)
    guard(a)
    a.bload('buffer_load_dword',pT[0],pT[1],sDBG,dw,mods='sc1')
    a.valu('v_lshrrev_b32',pT[0],shift_s,pT[0]); a.valu('v_and_b32',pT[0],mask,pT[0])
    a.valu('v_cmp_le_u32','vcc',need,pT[0])
    a.branch('s_cbranch_vccnz',l2)
    a.raw('s_sleep 8')
    a.branch('s_branch',l)
    a.label(l2)

def bf16r(a,dst_pk,x0,x1): a.valu('v_cvt_pk_bf16_f32',dst_pk,x0,x1)
def unpk(a,lo,hi,pk):
    a.valu('v_lshlrev_b32',lo,16,pk); a.valu('v_and_b32',hi,'0xffff0000',pk)

def task_ln(a):
    x=[V(28+k) for k in range(12)]; raw=V(40,6); s1=V(46); t=V(47); mean=V(48); o=V(50,2); vo=V(52); so=[V(53),V(54),V(55)]; mb=V(56); rstd=V(57)
    a.valu('v_lshlrev_b32',vo,3,pLane)
    for i in range(3):
        a.valu('v_add_u32',t,64*i,pLane)
        a.valu('v_lshrrev_b32',so[i],3,t); a.valu('v_lshlrev_b32',so[i],10,so[i])
        a.valu('v_and_b32',s1,3,t); a.valu('v_lshl_add_u32',so[i],s1,8,so[i])
        a.valu('v_bfe_u32',s1,t,2,1); a.valu('v_lshl_add_u32',so[i],s1,3,so[i])
    a.valu('v_cmp_gt_u32',S(90,2),32,pLane)
    for rr in range(4):
        a.salu('s_lshl_b32',sA,sI,4); a.salu('s_lshl_b32',sB,sWv_,2); a.salu('s_add_u32',sA,sA,sB); a.salu('s_add_u32',sRow,sA,rr)
        a.salu('s_mul_i32',sA,sRow,1280)
        a.valu('v_mov_b64',raw[4:6],0)
        a.bload('buffer_load_dwordx2',raw[0:2],vo,sX,sA); a.bload('buffer_load_dwordx2',raw[2:4],vo,sX,sA,off=512)
        a.salu('s_mov_b64','exec',S(90,2))
        a.bload('buffer_load_dwordx2',raw[4:6],vo,sX,sA,off=1024).rd|=set(raw[4:6].regs())
        a.salu('s_mov_b64','exec',-1)
        for k in range(6): unpk(a,x[2*k],x[2*k+1],raw[k])
        def wsum(dst):
            for sh in (1,2,4,8):
                a.valu('v_add_f32',dst,dst,dst,mods=f'row_shr:{sh} row_mask:0xf bank_mask:0xf bound_ctrl:0') if False else None
            for sh in (8,4,2,1): a.valu('v_add_f32',dst,dst,dst,mods=f'row_ror:{sh} row_mask:0xf bank_mask:0xf')
            xlane(a,'v_add_f32',dst,t)
        a.valu('v_add_f32',s1,x[0],x[1])
        for k in range(2,12): a.valu('v_add_f32',s1,s1,x[k])
        wsum(s1)
        a.valu('v_mul_f32',mean,'0x3acccccd',s1)
        a.valu('v_sub_f32',t,x[0],mean); a.valu('v_mul_f32',s1,t,t)
        for k in range(1,8): a.valu('v_sub_f32',t,x[k],mean); a.valu('v_fmac_f32',s1,t,t,rmw=True)
        a.valu('v_mov_b32',rstd,0)
        for k in range(8,12): a.valu('v_sub_f32',t,x[k],mean); a.valu('v_fmac_f32',rstd,t,t,rmw=True)
        a.valu('v_cndmask_b32',rstd,0,rstd,S(90,2)); a.valu('v_add_f32',s1,s1,rstd)
        wsum(s1)
        a.valu('v_mul_f32',s1,'0x3acccccd',s1)
        bf16r(a,t,mean,s1); unpk(a,mb,s1,t)
        a.valu('v_add_f32',s1,'0x3727c5ac',s1); bf16r(a,t,s1,s1); a.valu('v_lshlrev_b32',s1,16,t)
        a.valu('v_sqrt_f32',s1,s1); bf16r(a,t,s1,s1); a.valu('v_lshlrev_b32',s1,16,t)
        a.valu('v_rcp_f32',rstd,s1)
        a.salu('s_mul_i32',sA,sI,20480); a.salu('s_lshl_b32',sB,sWv_,6); a.salu('s_add_u32',sA,sA,sB); a.salu('s_add_u32',sA,sA,XN+16*rr)
        for i in range(3):
            for k in range(4):
                xx=x[4*i+k]
                a.valu('v_sub_f32',xx,xx,mb)
            for k in range(0,4,2):
                bf16r(a,t,x[4*i+k],x[4*i+k+1]); unpk(a,x[4*i+k],x[4*i+k+1],t)
            for k in range(4):
                xx=x[4*i+k]
                a.valu('v_mul_f32',mean,xx,rstd); a.valu('v_fma_f32',xx,'-'+str(mean),s1,xx); a.valu('v_fma_f32',xx,xx,rstd,mean)
            bf16r(a,o[0],x[4*i],x[4*i+1]); bf16r(a,o[1],x[4*i+2],x[4*i+3])
            if i==2: a.salu('s_mov_b64','exec',S(90,2))
            a.bstore('buffer_store_dwordx2',o,so[i],sWS,sA,mods='sc1')
            if i==2: a.salu('s_mov_b64','exec',-1)
    a.salu('s_lshr_b32',sA,sI,3); a.salu('s_lshl_b32',sA,sA,2); a.salu('s_add_u32',sA,sA,4*D_RB)
    signal(a,sA,1<<F_LN)

def rb_off(a,dst): a.salu('s_lshl_b32',dst,sRB,2); a.salu('s_add_u32',dst,dst,4*D_RB)

def epi_T(a,NT,store):
    q=[V(28,4),V(32,4)]; o=[V(36,4),V(40,4)]; n=0
    for tt in range(NT):
        for k4 in range(4):
            oo=o[n%2]; n+=1
            for h in range(2):
                rd_acc(a,q[h],ACC(2*k4+h,tt,NT))
                bf16r(a,oo[2*h],q[h][0],q[h][1]); bf16r(a,oo[2*h+1],q[h][2],q[h][3])
            store(tt,k4,oo)

def task_kq(a,name,srd,dest,field):
    set_wstride(a,8192)
    rb_off(a,sD); wait_field(a,sD,F_LN,15,8)
    a.salu('s_lshl_b32',sWo_,sJ,8)
    a.salu('s_mul_i32',sAo,sRB,8*20480); a.salu('s_add_u32',sAo,sAo,XN); a.salu('s_mov_b32',sAst,20480); a.salu('s_mov_b32',sCn,20)
    gemm_core(a,name,8,srd,8192,sCn,True)
    a.salu('s_lshl_b32',sOut,sRB,7); a.salu('s_add_u32',sOut,sOut,sJ); a.salu('s_lshl_b32',sOut,sOut,13); a.salu('s_add_u32',sOut,sOut,dest)
    def st(tt,k4,oo):
        a.salu('s_add_u32',sA,sOut,(tt//2)*32*8192+(tt%2)*4096)
        a.bstore('buffer_store_dwordx4',oo,pL16,sWS,sA,off=k4*1024,mods='sc1')
    epi_T(a,8,st)
    rb_off(a,sD); signal(a,sD,1<<field)
def task_v(a):
    set_wstride(a,8192)
    rb_off(a,sD); wait_field(a,sD,F_LN,15,8)
    a.salu('s_lshl_b32',sWo_,sJ,8)
    a.salu('s_mul_i32',sAo,sRB,8*20480); a.salu('s_add_u32',sAo,sAo,XN); a.salu('s_mov_b32',sAst,20480); a.salu('s_mov_b32',sCn,20)
    gemm_core(a,'gv',8,sWv,8192,sCn,False)
    a.salu('s_lshl_b32',sOut,sRB,7); a.salu('s_add_u32',sOut,sOut,sJ); a.salu('s_lshl_b32',sOut,sOut,13); a.salu('s_add_u32',sOut,sOut,VX)
    q=[V(28,4),V(32,4)]; o=[V(36,4),V(40,4)]; n=0
    for sg in range(4):
        for et in range(8):
            oo=o[n%2]; n+=1
            for h in range(2):
                rd_acc(a,q[h],ACC(et,2*sg+h,8))
                bf16r(a,oo[2*h],q[h][0],q[h][1]); bf16r(a,oo[2*h+1],q[h][2],q[h][3])
            a.salu('s_add_u32',sA,sOut,sg*32*8192+(et//4)*4096)
            a.bstore('buffer_store_dwordx4',oo,pL16,sWS,sA,off=(et%4)*1024,mods='sc1')
    rb_off(a,sD); signal(a,sD,1<<F_KV)

HKS=56
def task_f1(a):
    uid[0]+=1; l=f'L_f1skip{uid[0]}'
    set_wstride(a,3456)
    rb_off(a,sD); wait_field(a,sD,F_LN,15,8)
    a.salu('s_cmp_ge_u32',sJ,14,ndst=0); a.branch('s_cbranch_scc1',l)
    a.salu('s_lshl_b32',sWo_,sJ,8)
    a.salu('s_mul_i32',sAo,sRB,8*20480); a.salu('s_add_u32',sAo,sAo,XN); a.salu('s_mov_b32',sAst,20480); a.salu('s_mov_b32',sCn,20)
    gemm_core(a,'gf',8,sW1,3456,sCn,True)
    bias=V(44,32); bb=V(76,16); ok=V(92)
    a.valu('v_lshlrev_b32',pT[2],3,pG); a.salu('s_lshl_b32',sA,sJ,8)
    for ct in range(8): a.bload('buffer_load_dwordx2',bb[2*ct:2*ct+2],pT[2],sB1,sA,off=32*ct)
    for ct in range(8):
        unpk(a,bias[4*ct],bias[4*ct+1],bb[2*ct]); unpk(a,bias[4*ct+2],bias[4*ct+3],bb[2*ct+1])
    a.salu('s_mul_i32',sOut,sRB,8*HKS*1024); a.salu('s_lshl_b32',sA,sJ,12); a.salu('s_add_u32',sOut,sOut,sA); a.salu('s_add_u32',sOut,sOut,HF)
    a.salu('s_cmp_eq_u32',sJ,13,ndst=0); a.salu('s_cselect_b32',sE,0,-1)
    q=[V(28,4),V(32,4)]; o=[V(36,4),V(40,4)]; n=0; t=V(93)
    for tt in range(8):
        for k4 in range(4):
            oo=o[n%2]; n+=1
            for h in range(2):
                qq=q[h]; rd_acc(a,qq,ACC(2*k4+h,tt,8))
                for p in range(2):
                    bf16r(a,t,qq[2*p],qq[2*p+1]); unpk(a,qq[2*p],qq[2*p+1],t)
                    a.valu('v_add_f32',qq[2*p],qq[2*p],bias[4*(2*k4+h)+2*p]); a.valu('v_add_f32',qq[2*p+1],qq[2*p+1],bias[4*(2*k4+h)+2*p+1])
                    bf16r(a,t,qq[2*p],qq[2*p+1]); unpk(a,qq[2*p],qq[2*p+1],t)
                    a.valu('v_max_f32',qq[2*p],0,qq[2*p]); a.valu('v_max_f32',qq[2*p+1],0,qq[2*p+1])
                    a.valu('v_mul_f32',qq[2*p],qq[2*p],qq[2*p]); a.valu('v_mul_f32',qq[2*p+1],qq[2*p+1],qq[2*p+1])
                    bf16r(a,oo[2*h+p],qq[2*p],qq[2*p+1])
                    if k4>=2: a.valu('v_and_b32',oo[2*h+p],sE,oo[2*h+p])
            a.salu('s_add_u32',sA,sOut,tt*HKS*1024)
            a.bstore('buffer_store_dwordx4',oo,pL16,sWS,sA,off=k4*1024,mods='sc1')
    a.label(l)
    rb_off(a,sD); signal(a,sD,1<<F_H)

D_FIN=49
def task_at(a):
    uid[0]+=1; l=f'L_atw{uid[0]}'
    a.salu('s_lshr_b32',sRB,sI,2); rb_off(a,sD)
    wait_field(a,sD,F_Q,63,8); wait_field(a,sD,F_KV,63,16)
    QF=[[V(28+4*(4*u+k),4) for k in range(4)] for u in range(2)]
    KF=[[V(60+4*(4*T+k),4) for k in range(4)] for T in range(2)]
    VF=[V(92+4*e,4) for e in range(8)]
    K0=[V(124+4*k,4) for k in range(4)]
    V0=[V(140+2*e,2) for e in range(8)]
    a.salu('s_lshl_b32',sA,sI,5); a.salu('s_add_u32',sA,sA,sJ); a.salu('s_lshl_b32',sB,sA,13)
    for base,regs in ((QX,QF[0]+QF[1]),(KX,KF[0]+KF[1]),(VX,VF)):
        a.salu('s_add_u32',sE,sB,base); a.salu('s_add_u32',sF,sB,base+4096)
        for k,r in enumerate(regs): a.bload('buffer_load_dwordx4',r,pL16,sWS,sE if k<4 else sF,off=(k%4)*1024,mods='sc1')
    a.valu('v_mov_b32',pT[2],0); a.salu('s_add_u32',sE,sI,1)
    a.label(l)
    guard(a)
    a.bload('buffer_load_dwordx2',V(12,2),pT[2],sDBG,'0',off=4*D_PROG,mods='sc1')
    a.valu('v_cmp_le_i32',S(90,2),sE,pT[0]); a.valu('v_cmp_le_u32','vcc',32,pT[1])
    a.salu('s_or_b64','vcc','vcc',S(90,2))
    a.branch('s_cbranch_vccnz',l+'d')
    a.raw('s_sleep 16')
    a.branch('s_branch',l)
    a.label(l+'d')
    a.salu('s_lshl_b32',sB,sA,12); a.salu('s_add_u32',sB,sB,KMV)
    for j in range(2):
        a.salu('s_add_u32','m0',sLB,0)
        a.bload_lds('buffer_load_dwordx4',pL16,sWS,sB,off=1024*j,mods='sc1')
    g2=pT[3]; va=pT[4]; ta=pT[5]
    a.valu('v_and_b32',g2,1,pG); a.valu('v_lshlrev_b32',va,4,pN); a.valu('v_lshl_add_u32',va,g2,3,va)
    for e in range(8): a.bload('buffer_load_dwordx2',V0[e],va,sWS,sB,off=2048+256*e,mods='sc1')
    a.valu('v_lshrrev_b32',ta,2,pLane); a.valu('v_lshlrev_b32',ta,4,ta); a.valu('v_and_b32',pT[6],1,pLane); a.valu('v_lshl_add_u32',ta,pT[6],3,ta)
    a.valu('v_add_u32',ta,sLB,ta)
    a.wait(vm=0)
    for k in range(4):
        for hh in range(2): a.ds_read('ds_read_b64_tr_b16',K0[k][2*hh:2*hh+2],ta,512*k+256*hh)
    cm=[S(80+2*r,2) for r in range(4)]; m0_=S(88,2)
    for r in range(4):
        a.valu('v_lshl_add_u32',pT[6],pG,2,r); a.valu('v_cmp_gt_u32',cm[r],pT[6],pN)
    a.valu('v_cmp_le_u32',m0_,2,pG)
    NEG=pT[7]; a.valu('v_mov_b32',NEG,'0xce6e6b28')
    Sq={}; base=156
    for u in range(2):
        for T in range(3):
            if (T,u)==(2,0): continue
            Sq[(T,u)]=V(base,4); base+=4
            for k in range(4):
                src=K0[k] if T==0 else KF[T-1][k]
                a.mfma('v_mfma_f32_16x16x32_bf16',Sq[(T,u)],src,QF[u][k],Sq[(T,u)] if k else '0')
    t=pT[8]; mx=pT[9]; sm=pT[10]; tm=pT[11]
    Pq={}
    a.salu('s_mov_b32',sE,'0x3db504f3'); a.salu('s_mov_b32',sF,'0x3fb8aa3b')
    for u in range(2):
        Ts=[T for T in range(3) if (T,u) in Sq]
        vals=[]
        for T in Ts:
            q=Sq[(T,u)]
            for p in range(2):
                bf16r(a,t,q[2*p],q[2*p+1]); unpk(a,q[2*p],q[2*p+1],t)
                a.valu('v_mul_f32',q[2*p],sE,q[2*p]); a.valu('v_mul_f32',q[2*p+1],sE,q[2*p+1])
                bf16r(a,t,q[2*p],q[2*p+1]); unpk(a,q[2*p],q[2*p+1],t)
            for r in range(4):
                if T==0: a.valu('v_cndmask_b32',q[r],q[r],NEG,m0_)
                elif T==u+1: a.valu('v_cndmask_b32',q[r],q[r],NEG,cm[r])
                vals.append(q[r])
        a.valu('v_max_f32',mx,vals[0],vals[1])
        for k in range(2,len(vals),2): a.valu('v_max3_f32',mx,mx,vals[k],vals[k+1])
        xlane(a,'v_max_f32',mx,tm)
        for x in vals:
            a.valu('v_sub_f32',x,x,mx); a.valu('v_mul_f32',x,sF,x); a.valu('v_exp_f32',x,x)
        for r in range(4): a.valu('v_cndmask_b32',Sq[(0,u)][r],Sq[(0,u)][r],0,m0_)
        a.valu('v_add_f32',sm,vals[0],vals[1])
        for x in vals[2:]: a.valu('v_add_f32',sm,sm,x)
        xlane(a,'v_add_f32',sm,tm)
        a.valu('v_rcp_f32',sm,sm)
        for x in vals: a.valu('v_mul_f32',x,x,sm)
        px=V(176+6*u,4); pm=V(180+6*u,2); Pq[u]=(px,pm)
        for T,o in ((1,0),(2,2)):
            for h2 in range(2):
                if (T,u) in Sq: bf16r(a,px[o+h2],Sq[(T,u)][2*h2],Sq[(T,u)][2*h2+1])
                else: a.valu('v_mov_b32',px[o+h2],0)
        for h2 in range(2): bf16r(a,pm[h2],Sq[(0,u)][2*h2],Sq[(0,u)][2*h2+1])
    a.salu('s_lshl_b32',sA,sI,1); a.salu('s_lshl_b32',sA,sA,5); a.salu('s_add_u32',sA,sA,sJ); a.salu('s_lshl_b32',sA,sA,12); a.salu('s_add_u32',sOut,sA,OX)
    for u in range(2):
        px,pm=Pq[u]
        O=[V(28+4*e,4) for e in range(8)] if u==0 else [V(188+4*e,4) for e in range(8)]
        if u==0: O=[V(60+4*e,4) for e in range(8)]
        for e in range(8): a.mfma('v_mfma_f32_16x16x32_bf16',O[e],VF[e],px,'0')
        for e in range(8): a.mfma('v_mfma_f32_16x16x16_bf16',O[e],V0[e],pm,O[e])
        for k4 in range(4):
            oo=V(28+4*(4*u+k4),4)
            for h in range(2):
                bf16r(a,oo[2*h],O[2*k4+h][0],O[2*k4+h][1]); bf16r(a,oo[2*h+1],O[2*k4+h][2],O[2*k4+h][3])
            a.salu('s_add_u32',sA,sOut,u*32*4096)
            a.bstore('buffer_store_dwordx4',oo,pL16,sWS,sA,off=k4*1024,mods='sc1')
    a.salu('s_lshr_b32',sA,sI,3); a.salu('s_lshl_b32',sA,sA,2); a.salu('s_add_u32',sD,sA,4*D_AT)
    a.salu('s_and_b32',sA,sI,7); a.salu('s_lshl_b32',sA,sA,2); a.salu('s_lshl_b32',sE,1,sA)
    signal(a,sD,sE)

def task_fin(a):
    set_wstride(a,1280)
    rho=pT[2]; c=pT[3]; r7=pT[4]; b=pT[5]
    a.valu('v_lshrrev_b32',rho,2,pLane); a.valu('v_and_b32',c,3,pLane); a.valu('v_and_b32',r7,7,rho)
    a.valu('v_lshlrev_b32',b,8,rho); a.valu('v_and_b32',pT[6],1,c); a.valu('v_lshl_add_u32',b,pT[6],4,b); a.valu('v_add_u32',b,sLB,b)
    a.valu('v_lshrrev_b32',c,1,c)
    for ct in range(8):
        a.valu('v_add_u32',pT[6],2*(ct//2),c); a.valu('v_xor_b32',pT[6],pT[6],r7); a.valu('v_lshl_add_u32',pT[6],pT[6],5,b)
        a.valu('v_add_u32',pTR[ct],8*(ct%2),pT[6])
    a.salu('s_lshr_b32',sRB,sI,2); rb_off(a,sD); wait_field(a,sD,F_H,15,4)
    a.salu('s_lshl_b32',sE,sWv_,4); a.salu('s_cmp_eq_u32',sWv_,3,ndst=0); a.salu('s_cselect_b32',sE,44,sE)
    a.salu('s_cmp_ge_u32',sWv_,2,ndst=0); a.salu('s_cselect_b32',sCn,12,16)
    a.salu('s_mul_i32',sWo_,sE,32*1280); a.salu('s_lshl_b32',sA,sJ,8); a.salu('s_add_u32',sWo_,sWo_,sA)
    a.salu('s_mul_i32',sAo,sI,2*HKS*1024); a.salu('s_lshl_b32',sA,sE,10); a.salu('s_add_u32',sAo,sAo,sA); a.salu('s_add_u32',sAo,sAo,HF)
    a.salu('s_mov_b32',sAst,HKS*1024)
    gemm_core(a,'g2',2,sW2,1280,sCn,True)
    for r in range(64):
        a.valu('v_accvgpr_read_b32',pT[2],A(r)); a.valu('v_accvgpr_write_b32',A(64+r),pT[2])
    a.salu('s_lshr_b32',sA,sI,3); a.salu('s_lshl_b32',sA,sA,2); a.salu('s_add_u32',sD,sA,4*D_AT)
    a.salu('s_and_b32',sA,sI,7); a.salu('s_lshl_b32',sF,sA,2)
    wait_field(a,sD,sF,15,8)
    a.salu('s_mul_i32',sWo_,sWv_,1024*1280); a.salu('s_lshl_b32',sA,sJ,8); a.salu('s_add_u32',sWo_,sWo_,sA)
    a.salu('s_lshl_b32',sAo,sI,18); a.salu('s_lshl_b32',sA,sWv_,15); a.salu('s_add_u32',sAo,sAo,sA); a.salu('s_add_u32',sAo,sAo,OX)
    a.salu('s_mov_b32',sAst,131072); a.salu('s_mov_b32',sCn,32)
    gemm_core(a,'go',2,sWo,1280,sCn,True)
    a.valu('v_add_u32',pT[2],sLB,pL16)
    for qi in range(32): a.ds_write('ds_write_b128',pT[2],A(4*qi,4),qi*1024)
    a.wait(lgkm=0); a.barrier()
    a.salu('s_lshl_b32',sA,sWv_,12); a.valu('v_add_u32',pT[2],sA,pL16)
    xo=pT[3]; a.salu('s_movk_i32',sA,1280); a.valu('v_mul_lo_u32',xo,pN,sA); a.valu('v_lshl_add_u32',xo,pG,4,xo)
    a.salu('s_mul_i32',sE,sI,32*1280); a.salu('s_lshl_b32',sA,sJ,8); a.salu('s_add_u32',sE,sE,sA); a.salu('s_lshl_b32',sB,sWv_,6); a.salu('s_add_u32',sE,sE,sB)
    a.salu('s_add_u32',sF,sE,16*1280)
    xr=[V(28,4),V(32,4)]; b2=V(36,4); bo=pT[4]
    a.bload('buffer_load_dwordx4',xr[0],xo,sX,sE); a.bload('buffer_load_dwordx4',xr[1],xo,sX,sF)
    a.valu('v_lshlrev_b32',bo,4,pG); a.salu('s_add_u32',sA,sA,sB); a.bload('buffer_load_dwordx4',b2,bo,sB2,sA)
    bias=V(40,8)
    for k in range(4): unpk(a,bias[2*k],bias[2*k+1],b2[k])
    for tt in range(2):
        S_=[V(48,4),V(52,4)]; F_=[V(56,4),V(60,4)]; tmp=[V(64+4*k,4) for k in range(4)]
        for st_,dst in ((0,S_),(1,F_)):
            for h in range(2):
                for wv in range(4):
                    off=wv*32768+(st_*16+h*2+tt)*1024
                    if off<65536: a.ds_read('ds_read_b128',tmp[wv],pT[2],off)
                    else:
                        a.valu('v_add_u32',pT[5],65536,pT[2]); a.ds_read('ds_read_b128',tmp[wv],pT[5],off-65536)
                for r in range(4):
                    a.valu('v_add_f32',dst[h][r],tmp[0][r],tmp[1][r]); a.valu('v_add_f32',tmp[2][r],tmp[2][r],tmp[3][r]); a.valu('v_add_f32',dst[h][r],dst[h][r],tmp[2][r])
        o=V(80,4); t=V(84); e0=V(85); e1=V(86); x0=V(87); x1=V(88)
        a.salu('s_mov_b32',sA,'0xbfb8aa3b')
        for k in range(4):
            s0,s1=S_[k//2][2*(k%2)],S_[k//2][2*(k%2)+1]; f0,f1=F_[k//2][2*(k%2)],F_[k//2][2*(k%2)+1]
            bf16r(a,t,s0,s1); unpk(a,s0,s1,t)
            bf16r(a,t,f0,f1); unpk(a,f0,f1,t)
            a.valu('v_add_f32',f0,f0,bias[2*k]); a.valu('v_add_f32',f1,f1,bias[2*k+1])
            bf16r(a,t,f0,f1); unpk(a,f0,f1,t)
            for f,e in ((f0,e0),(f1,e1)):
                a.valu('v_mul_f32',e,sA,f); a.valu('v_exp_f32',e,e); a.valu('v_add_f32',e,1.0,e); a.valu('v_rcp_f32',e,e); a.valu('v_mul_f32',f,f,e)
            bf16r(a,t,f0,f1); unpk(a,f0,f1,t)
            a.valu('v_mul_f32',s0,s0,f0); a.valu('v_mul_f32',s1,s1,f1)
            bf16r(a,t,s0,s1); unpk(a,s0,s1,t)
            unpk(a,x0,x1,xr[tt][k])
            a.valu('v_add_f32',s0,s0,x0); a.valu('v_add_f32',s1,s1,x1)
            bf16r(a,o[k],s0,s1)
        a.bstore('buffer_store_dwordx4',o,xo,sOUT,sE if tt==0 else sF)
    a.wait(lgkm=0); a.barrier()
    par_setup(a)
```

```python
import sys
from par import *
KN='recurrent_scan__memory_aug_recurrent_mem_tr__dense_activation_squared_relu__prompt_kernel'
D1,D2=2,4
a=Asm()
a.label(KN)
a.salu('s_cmp_ge_u32',S(2),256,ndst=0); a.branch('s_cbranch_scc1','L_end')
load_srds(a)
a.salu('s_mov_b32',S(101),0)
a.raw("s_getreg_b32 s3, hwreg(HW_REG_XCC_ID)",wr=['s3'],kind='salu')
a.salu('s_and_b32',S(3),S(3),15)
t=V(12); z=V(13); sv=S(4,2)
def bcast_atomic(dw,val,dst,cond_label=None):
    a.valu('v_mov_b32',t,val); a.valu('v_mov_b32',z,4*dw)
    a.valu('v_cmp_eq_u32','vcc',0,vT); a.salu('s_and_saveexec_b64',sv,'vcc')
    a.branch('s_cbranch_execz',f'L_ba{dw}_{len(a.ins)}'); lbl=f'L_ba{dw}_{len(a.ins)-1}'
    a.batomic('buffer_atomic_add',t,z,sDBG,'0',ret=True,mods='sc1')
    a.wait(vm=0)
    a.valu('v_mov_b32',z,163832); a.ds_write('ds_write_b32',z,t)
    a.label(lbl)
    a.salu('s_mov_b64','exec',sv)
    a.wait(lgkm=0); a.barrier()
    a.valu('v_mov_b32',z,163832); a.ds_read('ds_read_b32',t,z); a.wait(lgkm=0)
    a.valu('v_readfirstlane_b32',dst,t)
    a.barrier()
a.salu('s_mov_b32',sH,99)
a.salu('s_cmp_lg_u32',S(3),0,ndst=0); a.branch('s_cbranch_scc1','L_arr0')
bcast_atomic(D_CHT,1,sH)
a.label('L_arr0')
bcast_atomic(D_ARR,1,S(6))
a.salu('s_cmp_lt_u32',sH,32,ndst=0); a.branch('s_cbranch_scc1','L_chain')
a.label('L_par')
par_setup(a)
a.label('L_next')
a.valu('v_mov_b32',z,0)
a.bload('buffer_load_dwordx4',V(16,4),z,sDBG,'0',mods='sc1')
a.valu('v_readfirstlane_b32',sA,V(16+D_CHT)); a.valu('v_readfirstlane_b32',sB,V(16+D_ARR))
a.salu('s_cmp_lt_u32',sA,32,ndst=0); a.salu('s_cselect_b32',sA,1,0)
a.salu('s_cmp_ge_u32',sB,256,ndst=0); a.salu('s_cselect_b32',sB,1,0)
a.salu('s_and_b32',sA,sA,sB)
a.valu('v_mov_b32',t,sA); a.valu('v_mov_b32',z,163828)
a.salu('s_cmp_lg_u32',sWv_,0,ndst=0); a.branch('s_cbranch_scc1','L_fb0')
a.ds_write('ds_write_b32',z,t)
a.label('L_fb0')
a.wait(lgkm=0); a.barrier()
a.ds_read('ds_read_b32',t,z); a.wait(lgkm=0); a.valu('v_readfirstlane_b32',sA,t)
a.salu('s_cmp_eq_u32',sA,0,ndst=0); a.branch('s_cbranch_scc1','L_deq')
bcast_atomic(D_CHT,1,sH)
a.salu('s_cmp_lt_u32',sH,32,ndst=0); a.branch('s_cbranch_scc1','L_chain')
par_setup(a)
a.label('L_deq')
bcast_atomic(D_TASK,1,sTask)
a.salu('s_cmp_lt_u32',sTask,128,ndst=0); a.branch('s_cbranch_scc0','L_t1')
a.salu('s_mov_b32',sI,sTask); task_ln(a); a.branch('s_branch','L_next')
a.label('L_t1')
a.salu('s_cmp_lt_u32',sTask,384,ndst=0); a.branch('s_cbranch_scc0','L_t2')
a.salu('s_sub_u32',sA,sTask,128); a.salu('s_lshr_b32',sRB,sA,4); a.salu('s_and_b32',sA,sA,15)
a.salu('s_and_b32',sB,sA,7); a.salu('s_lshl_b32',sB,sB,2); a.salu('s_add_u32',sJ,sB,sWv_)
a.salu('s_cmp_ge_u32',sA,8,ndst=0); a.branch('s_cbranch_scc1','L_tv')
task_kq(a,'gk',sWk,KX,F_KV); a.branch('s_branch','L_next')
a.label('L_tv'); task_v(a); a.branch('s_branch','L_next')
a.label('L_t2')
a.salu('s_cmp_lt_u32',sTask,576,ndst=0); a.branch('s_cbranch_scc0','L_t3')
a.salu('s_sub_u32',sA,sTask,384); a.salu('s_mul_hi_u32',sRB,sA,'0x15555556'); a.salu('s_mul_i32',sB,sRB,12); a.salu('s_sub_u32',sA,sA,sB)
a.salu('s_and_b32',sB,sA,7); a.salu('s_lshl_b32',sB,sB,2); a.salu('s_add_u32',sJ,sB,sWv_)
a.salu('s_cmp_ge_u32',sA,8,ndst=0); a.branch('s_cbranch_scc1','L_tf')
task_kq(a,'gq',sWq,QX,F_Q); a.branch('s_branch','L_next')
a.label('L_tf'); task_f1(a); a.branch('s_branch','L_next')
a.label('L_t3')
a.salu('s_cmp_lt_u32',sTask,576+66*13,ndst=0); a.branch('s_cbranch_scc0','L_end')
a.salu('s_sub_u32',sA,sTask,576); a.salu('s_mul_hi_u32',sI,sA,'0x13b13b14'); a.salu('s_mul_i32',sB,sI,13); a.salu('s_sub_u32',sA,sA,sB)
a.salu('s_cmp_ge_u32',sA,8,ndst=0); a.branch('s_cbranch_scc1','L_tfin')
a.salu('s_cmp_ge_u32',sI,64,ndst=0); a.branch('s_cbranch_scc1','L_next')
a.salu('s_lshl_b32',sB,sA,2); a.salu('s_add_u32',sJ,sB,sWv_)
task_at(a); a.branch('s_branch','L_next')
a.label('L_tfin')
a.salu('s_cmp_lt_u32',sI,2,ndst=0); a.branch('s_cbranch_scc1','L_next')
a.salu('s_sub_u32',sI,sI,2); a.salu('s_sub_u32',sJ,sA,8)
task_fin(a); a.branch('s_branch','L_next')
a.label('L_chain')
chain_setup(a)
chain_init_comm(a)
a.wait(vm=0); a.barrier()
a.salu('s_lshl_b32',sT0,1,S(3))
a.valu('v_mov_b32',P(0),sT0); a.valu('v_mov_b32',P(1),4*D_XM); a.valu('v_mov_b32',P(2),1); a.valu('v_mov_b32',P(3),4*D_CHBAR)
a.salu('s_cmp_lg_u32',sW,0,ndst=0); a.branch('s_cbranch_scc1','L_ch0')
a.salu('s_mov_b64','exec',1)
a.batomic('buffer_atomic_or',P(0),P(1),sDBG,'0',mods='sc1'); a.wait(vm=0)
a.batomic('buffer_atomic_add',P(2),P(3),sDBG,'0',mods='sc1')
a.salu('s_mov_b64','exec',-1)
a.label('L_ch0')
chain_load_weights(a)
cuid=[0]
def kv_wait(a,first=False):
    cuid[0]+=1; l=f'L_kvw{cuid[0]}'
    if not first:
        a.salu('s_and_b32',sT0,sStep,3); a.salu('s_cmp_lg_u32',sT0,0,ndst=0); a.branch('s_cbranch_scc1',l+'d')
    a.salu('s_and_b32',sT0,sStep,0xfc); a.salu('s_add_u32',sT0,sT0,4*D_RB)
    a.valu('v_mov_b32',P(41),0)
    a.label(l)
    guard(a)
    a.bload('buffer_load_dword',P(40),P(41),sDBG,sT0,mods='sc1')
    a.valu('v_bfe_u32',P(40),P(40),F_KV,6); a.valu('v_cmp_le_u32','vcc',16,P(40))
    a.branch('s_cbranch_vccnz',l+'d')
    a.raw('s_sleep 4'); a.branch('s_branch',l)
    a.label(l+'d')
a.salu('s_cmp_lg_u32',sW,3,ndst=0); a.branch('s_cbranch_scc1','L_nodma0')
kv_wait(a,True); dma_kv(a); a.wait(vm=0)
a.label('L_nodma0')
a.valu('v_mov_b32',P(4),0)
a.label('L_arr')
guard(a)
a.bload('buffer_load_dwordx4',P(0,4),P(4),sDBG,'0',off=4*D_CHBAR,mods='sc1')
a.valu('v_cmp_gt_u32','vcc',32,P(0))
a.branch('s_cbranch_vccnz','L_arr')
a.valu('v_readfirstlane_b32',S(6),P(3))
chain_first(a)
def post_pub(a):
    a.salu('s_sub_u32',sT0,sStep,2); a.valu('v_mov_b32',P(80),sT0); a.valu('v_mov_b32',P(81),4*D_PROG)
    a.salu('s_mov_b64','exec',1)
    a.bstore('buffer_store_dword',P(80),P(81),sDBG,'0',mods='sc1')
    a.salu('s_mov_b64','exec',-1)
a.salu('s_bcnt1_i32_b32',sT0,S(6)); a.salu('s_cmp_lg_u32',sT0,1,ndst=0); a.branch('s_cbranch_scc1','L_slow')
chain_loop(a,'','f',D1,D2,post_pub=post_pub,pre_dma=kv_wait)
a.branch('s_branch','L_chend')
a.label('L_slow')
chain_loop(a,'sc1','s',D1,D2,post_pub=post_pub,pre_dma=kv_wait)
a.label('L_chend')
a.wait(vm=0); a.barrier()
a.salu('s_cmp_lg_u32',sW,0,ndst=0); a.branch('s_cbranch_scc1','L_end')
a.valu('v_mov_b32',P(0),1); a.valu('v_mov_b32',P(1),4*D_FIN)
a.salu('s_mov_b64','exec',1)
a.batomic('buffer_atomic_add',P(0),P(1),sDBG,'0',mods='sc1')
a.label('L_end')
a.raw('s_endpgm')
a.auto_wait(); a.hazards()
ref=open('recurrent_scan__memory_aug_recurrent_mem_tr__dense_activation_squared_relu__prompt.s.ref').read()
hdr=ref[:ref.index('; Override launch geometry')]+f"""; @launch grid=(256,1,1) block=(256,1,1) lds=163840
.amdgcn_target "amdgcn-amd-amdhsa--gfx950"
.text
.globl {KN}
.p2align 8
.type {KN},@function
"""
ftr=f"""
.section .rodata,"a"
.p2align 6
.amdhsa_kernel {KN}
  .amdhsa_next_free_vgpr 512
  .amdhsa_next_free_sgpr 102
  .amdhsa_accum_offset 256
  .amdhsa_group_segment_fixed_size 0
  .amdhsa_kernarg_size 120
  .amdhsa_user_sgpr_count 2
  .amdhsa_user_sgpr_kernarg_segment_ptr 1
  .amdhsa_system_sgpr_workgroup_id_x 1
.end_amdhsa_kernel
"""
out=sys.argv[1] if len(sys.argv)>1 else 'recurrent_scan__memory_aug_recurrent_mem_tr__dense_activation_squared_relu__prompt.s'
open(out,'w').write(hdr+a.text()+ftr)
print(len(a.ins),'instructions')
```

```python
from asmlib import *
import os
EXP=os.environ.get('EXP','')
XN=0x0; KX=0x0400000; VX=0x1400000; QX=0x2400000; HF=0x3400000; OX=0x3C00000
KMV=0x4C20000; PB=0x5480000; MB=0x5500000; SW=0x5600000; FL=0x5A00000
WS_BYTES=268435456
LMEM=131072; LKX=LMEM+10240; LVX=LKX+8192; LQE=LVX+8192; LKE=LQE+2048; LVE=LKE+2048
sX=S(8,4); sM0=S(12,4); sWq=S(16,4); sWk=S(20,4); sWv=S(24,4); sWo=S(28,4); sW1=S(32,4); sB1=S(36,4)
sW2=S(40,4); sB2=S(44,4); sOUT=S(48,4); sDBG=S(52,4); sWS=S(56,4)
SRDS=[(sX,0,2621440),(sM0,8,10240),(sWq,16,5242880),(sWk,24,5242880),(sWv,32,5242880),(sWo,40,5242880),
      (sW1,64,2211840),(sB1,72,3456),(sW2,80,2211840),(sB2,88,1280),(sOUT,96,2621440),(sDBG,104,256),(sWS,112,WS_BYTES)]
sH=S(60); sW=S(61); sStep=S(62); sTag=S(63); sMask=S(64); sUnit=S(65); sRSoff=S(66); sMSToff=S(67)
sPst=[S(68+i) for i in range(5)]; sAG=[S(73+i) for i in range(5)]; sSW=S(78); sKXo=S(79); sKMVo=S(80); sVXo=S(81)
sHi=S(82,2); sMaskP=S(84); sBM=S(85); sT0=S(86); sT1=S(87); sT2=S(88); sT3=S(89); sC=S(90,2); sT4=S(92); sT5=S(93); sPubL=S(94); sPerm=S(95)
sSWb=[S(32+i) for i in range(6)]
sDM=[S(40+i) for i in range(4)]
vT=V(0); vWT=V(1); vMEMr=V(2); vFR=V(3); vQEr=V(4); vVEr=V(5); vQEw=V(6); vMWA=V(7); vMWB=V(8)
vPst=V(9); vJunk=V(10); vMst=V(14+47); vNEG=V(11); vL16=V(12); vIdx=V(13)
PB0=14
def P(i,n=1): return V(PB0+i,n)
WV0=PB0+82

SAFE=os.environ.get('SAFE','')=='1'
def guard(a):
    if SAFE:
        a.salu('s_add_u32',S(101),S(101),1); a.salu('s_cmp_gt_u32',S(101),0x300000,ndst=0); a.branch('s_cbranch_scc1','L_end')
def load_srds(a):
    for srd,off,n in SRDS:
        a.raw(f"s_load_dwordx2 {S(srd.i,2)}, s[0:1], {off}", wr=S(srd.i,2).regs(), kind='smem')
    a.wait(lgkm=0)
    for srd,off,n in SRDS:
        a.salu('s_and_b32', srd[1], srd[1], '0xffff')
        a.salu('s_mov_b32', srd[2], str(n))
        a.salu('s_mov_b32', srd[3], '0x00020000')

LDS_SLABS=[('q',1),('q',3),('q',5),('q',7),('q',9),('o',1,0),('o',2,0),('o',3,0)]
STREAM=[('k',1,1),('k',2,0),('k',2,1), ('k',5,0),('k',5,1),('k',6,0), ('k',9,0),('k',9,1),('v',9,1), ('o',4,0,1),('o',4,1,0),('o',4,1,1)]
ALL_SLABS=[(m,ks) for ks in range(10) for m in 'qk']+[('v',ks) for ks in range(10)]+[('o',i,k2) for i in range(5) for k2 in range(2)]
tile_loc={}
_res=[V(WV0+8*i,8) for i in range(20)]+[A(8*i,8) for i in range(32)]
_ri=0
for sl in ALL_SLABS:
    for ct in range(2):
        t=sl+(ct,)
        if sl in LDS_SLABS: tile_loc[t]=('lds',LDS_SLABS.index(sl)*2+ct)
        elif t in STREAM: tile_loc[t]=('str',STREAM.index(t))
        else: tile_loc[t]=('reg',_res[_ri]); _ri+=1
assert _ri==len(_res)==52, _ri

def chain_setup(a):
    L=P(0); g=P(1); n=P(2); t1=P(3); t2=P(4); t3=P(5); u=P(6)
    a.valu('v_and_b32',L,63,vT)
    a.valu('v_lshrrev_b32',t1,6,vT)
    a.valu('v_readfirstlane_b32',sW,t1)
    a.valu('v_lshrrev_b32',g,4,L)
    a.valu('v_and_b32',n,15,L)
    a.valu('v_lshlrev_b32',vL16,4,L)
    a.salu('s_lshl_b32',sT0,sW,15)
    a.valu('v_add_u32',vWT,sT0,vL16)
    a.valu('v_and_b32',t1,7,L); a.valu('v_xor_b32',t1,t1,g); a.valu('v_lshl_add_u32',t1,g,3,t1)
    a.valu('v_lshlrev_b32',t1,4,t1)
    a.valu('v_add_u32',vMEMr,LMEM,t1)
    a.valu('v_add_u32',vFR,LMEM,vL16)
    a.valu('v_lshrrev_b32',t1,2,L); a.valu('v_lshlrev_b32',t1,4,t1); a.valu('v_and_b32',t2,1,L); a.valu('v_lshl_add_u32',t1,t2,3,t1)
    a.valu('v_add_u32',vQEr,LQE,t1)
    g2=P(7); ct=P(8)
    a.valu('v_and_b32',g2,1,g); a.valu('v_lshrrev_b32',ct,1,g)
    a.valu('v_lshlrev_b32',t1,4,n); a.valu('v_lshl_add_u32',t1,g2,3,t1); a.valu('v_add_u32',vVEr,LVE,t1)
    a.valu('v_lshl_add_u32',t1,ct,8,t1)
    a.salu('s_lshl_b32',sT0,sW,9); a.salu('s_add_u32',sT0,sT0,LQE)
    a.valu('v_add_u32',vQEw,sT0,t1)
    rh=P(9); gg=P(10)
    a.valu('v_lshrrev_b32',u,1,vT); a.valu('v_and_b32',rh,1,vT)
    a.valu('v_bfe_u32',gg,u,1,2)
    a.valu('v_lshlrev_b32',t1,2,rh); a.valu('v_xor_b32',t1,t1,gg); a.valu('v_lshl_add_u32',t1,gg,3,t1)
    a.valu('v_lshlrev_b32',t1,4,t1)
    a.valu('v_lshrrev_b32',t2,3,u); a.valu('v_lshl_add_u32',t2,t2,9,t1)
    a.valu('v_and_b32',t3,1,u); a.valu('v_lshl_add_u32',t2,t3,3,t2)
    a.valu('v_add_u32',vMWA,LMEM,t2)
    a.valu('v_lshrrev_b32',t2,5,u); a.valu('v_add_u32',t2,16,t2); a.valu('v_lshl_add_u32',t2,t2,9,t1)
    a.valu('v_bfe_u32',L,u,3,2); a.valu('v_lshl_add_u32',t3,L,1,t3); a.valu('v_lshl_add_u32',t2,t3,1,t2)
    a.valu('v_add_u32',vMWB,LMEM,t2)
    a.valu('v_lshrrev_b32',t1,3,n); a.valu('v_lshl_add_u32',t1,ct,1,t1); a.valu('v_lshlrev_b32',t1,12,t1)
    a.valu('v_and_b32',t2,7,n); a.valu('v_lshl_add_u32',t1,t2,4,t1); a.valu('v_lshl_add_u32',vPst,g2,3,t1)
    a.valu('v_cmp_le_u32',sHi,8,n)
    a.valu('v_mov_b32',t1,'0x4444'); a.valu('v_mov_b32',t2,'0xeeee')
    a.valu('v_cndmask_b32',vIdx,t1,t2,sHi)
    a.valu('v_cmp_le_u32','vcc',1,ct); a.valu('v_mov_b32',t1,'0x10000'); a.valu('v_mov_b32',t2,'0xf149f2ca')
    a.valu('v_cndmask_b32',vNEG,t1,t2,'vcc')
    a.salu('s_lshl_b32',sUnit,sW,5); a.salu('s_add_u32',sUnit,sUnit,sH)
    a.salu('s_lshl_b32',sRSoff,sUnit,12); a.salu('s_add_u32',sRSoff,sRSoff,PB)
    a.salu('s_lshl_b32',sMSToff,sUnit,8); a.salu('s_add_u32',sMSToff,sMSToff,MB)
    a.salu('s_mul_i32',sT0,sW,5*16384); a.salu('s_lshl_b32',sT1,sH,7); a.salu('s_add_u32',sT0,sT0,sT1); a.salu('s_add_u32',sPst[0],sT0,PB)
    for i in range(1,5): a.salu('s_add_u32',sPst[i],sPst[i-1],16384)
    a.salu('s_lshl_b32',sT0,sW,10)
    for i in range(5): a.salu('s_add_u32',sAG[i],sT0,MB+4096*i)
    a.salu('s_lshl_b32',sT1,sW,9); a.salu('s_add_u32',sPubL,sT1,LKE)
    a.salu('s_lshl_b32',sT0,sH,2); a.salu('s_add_u32',sT0,sT0,sW); a.salu('s_lshl_b32',sT0,sT0,15); a.salu('s_add_u32',sSW,sT0,SW)
    for i in range(6): a.salu('s_add_u32',sSWb[i],sSW,4096*i)
    a.salu('s_lshl_b32',sT0,sH,13)
    a.salu('s_add_u32',sKXo,sT0,KX); a.salu('s_add_u32',sVXo,sT0,VX)
    a.salu('s_lshl_b32',sT0,sH,12); a.salu('s_lshl_b32',sT1,sW,9); a.salu('s_add_u32',sT0,sT0,sT1); a.salu('s_add_u32',sKMVo,sT0,KMV-32*4096)
    a.salu('s_mov_b32',sC[0],'0x3e0293ee'); a.salu('s_mov_b32',sC[1],'0x3e0293ee')
    a.salu('s_mov_b32',sStep,0)
    a.salu('s_mov_b32',sBM,'0x10001'); a.salu('s_mov_b32',sMaskP,1); a.salu('s_mov_b32',sPerm,'0x07060302')
    a.salu('s_mov_b32',sTag,2); a.salu('s_mov_b32',sMask,1)

def mk_mst(a):
    a.valu('v_and_b32',vMst,0xfff,vPst); a.valu('v_lshlrev_b32',vMst,1,vMst)
def chain_init_comm(a):
    one=P(0,4)
    a.valu('v_mov_b32',one[0],1); a.valu('v_mov_b32',one[1],1)
    for i in range(5): a.bstore('buffer_store_dwordx2',one[0:2],vPst,sWS,sPst[i],mods='sc1')
    a.salu('s_cmp_ge_u32',sUnit,80,ndst=0); a.branch('s_cbranch_scc1','L_ci_skip')
    for k in range(4): a.valu('v_mov_b32',P(4+k),2)
    mk_mst(a)
    a.bstore('buffer_store_dwordx4',P(4,4),vMst,sWS,sMSToff,mods='sc1')
    a.label('L_ci_skip')

def dma_kv(a):
    for k,(soff,base) in enumerate(((sKXo,LKX),(sVXo,LVX))):
        for hf in range(2):
            a.salu('s_mov_b32','m0',base+4096*hf)
            if hf: a.salu('s_add_u32',sT1,soff,4096)
            for j in range(4):
                a.bload_lds('buffer_load_dwordx4',vL16,sWS,sT1 if hf else soff,off=1024*j,mods='sc1')
def publish(a,tmp):
    if 'nopub' in EXP: return
    a.valu('v_and_b32',vT,0x1f0,vL16); a.valu('v_and_b32',tmp[0],0x200,vL16); a.valu('v_lshl_add_u32',vT,tmp[0],2,vT)
    a.valu('v_add_u32',tmp[0],sPubL,vT)
    a.ds_read('ds_read_b128',tmp,tmp[0])
    a.bstore('buffer_store_dwordx4',tmp,vT,sWS,sKMVo,mods='sc1')
def prefetch_kv(a,tmp):
    if 'nopf' in EXP: return
    a.valu('v_lshlrev_b32',vT,3,vL16)
    a.salu('s_add_u32',sT1,sKXo,32*8192); a.salu('s_add_u32',sT2,sVXo,32*8192)
    a.salu('s_bitcmp0_b32',sW,0,ndst=0); a.salu('s_cselect_b32',sT1,sT1,sT2)
    a.bload('buffer_load_dword',tmp,vT,sWS,sT1,mods='sc1')

def chain_load_weights(a):
    vq=P(0); vo=P(1); ta=P(2); tb=P(3); tc=P(4); L=P(5); gB=P(6); r=P(7); c=P(8); t1=P(9); t2=P(10)
    a.valu('v_and_b32',L,63,vT); a.valu('v_lshrrev_b32',gB,4,L); a.valu('v_bfe_u32',r,L,2,2); a.valu('v_and_b32',c,3,L)
    a.valu('v_lshrrev_b32',t1,2,L); a.valu('v_lshlrev_b32',t2,4,c)
    a.valu('v_lshl_add_u32',vq,t1,13,t2)
    a.salu('s_movk_i32',sT0,1280); a.valu('v_mul_lo_u32',t1,t1,sT0); a.valu('v_add_u32',vo,t1,t2)
    a.salu('s_lshl_b32',sT0,sW,15)
    r0=P(11); r1=P(12); b0=P(13); b1=P(14)
    a.valu('v_and_b32',r0,1,r); a.valu('v_lshrrev_b32',r1,1,r); a.valu('v_and_b32',b0,1,gB); a.valu('v_lshrrev_b32',b1,1,gB)
    cp=P(15)
    a.valu('v_lshlrev_b32',cp,3,c); a.valu('v_lshl_add_u32',cp,r1,5,cp); a.valu('v_add_u32',cp,sT0,cp)
    a.valu('v_lshl_add_u32',t1,r0,4,gB); a.valu('v_lshl_add_u32',ta,t1,6,cp)
    a.valu('v_lshl_add_u32',t1,b0,4,r0); a.valu('v_lshl_add_u32',t1,b1,1,t1); a.valu('v_lshl_add_u32',tb,t1,6,cp)
    a.valu('v_lshl_add_u32',t1,b0,4,r0); a.valu('v_lshl_add_u32',t1,b1,2,t1); a.valu('v_lshl_add_u32',tc,t1,6,cp)
    a.salu('s_lshl_b32',sT2,sH,8); a.salu('s_lshl_b32',sT1,sW,6); a.salu('s_add_u32',sT2,sT2,sT1)
    a.salu('s_mul_i32',sT3,sH,163840); a.salu('s_mul_i32',sT1,sW,320); a.salu('s_add_u32',sT3,sT3,sT1)
    a.salu('s_lshl_b32',sT4,sW,15)
    order=[s for s in ALL_SLABS if s not in LDS_SLABS]+LDS_SLABS
    def slot_of(n): return (n%8) if n<32 else (n-32)
    def issue(n):
        sl=order[n]; slot=slot_of(n)
        for j in range(4):
            a.salu('s_add_u32','m0',sT4,slot*4096+j*1024)
            if sl[0]=='o':
                _,i,k2=sl
                a.salu('s_add_u32',sT5,sT3,(64*k2+16*j)*1280+i*64)
                a.bload_lds('buffer_load_dwordx4',vo,sWo,sT5)
            else:
                m,ks=sl
                d0=(128*j+16*ks) if ks<8 else (512+64*(ks-8)+16*j)
                a.salu('s_add_u32',sT5,sT2,d0*8192)
                a.bload_lds('buffer_load_dwordx4',vq,{'q':sWq,'k':sWk,'v':sWv}[m],sT5)
    tmp=[P(16,8),P(24,8),P(32,8),P(40,8)]
    DEPTH=7
    for n in range(DEPTH): issue(n)
    pend=[]
    for n in range(DEPTH): pend += [n]*4
    for n in range(len(order)):
        sl=order[n]; slot=slot_of(n)
        last=max(k for k,x in enumerate(pend) if x==n)
        a.wait(vm=min(63,len(pend)-1-last)); pend=pend[last+1:]
        if sl[0]=='o': addr=tc; imm=lambda ip,ct:(32*ct+8*(ip//2)+2*(ip%2))*64
        elif sl[1]<8: addr=ta; imm=lambda ip,ct:(32*(ip%2)+4*(ip//2)+8*ct)*64
        else: addr=tb; imm=lambda ip,ct:(32*ct+8*(ip%2)+4*(ip//2))*64
        dst=[]
        for ct in range(2):
            loc=tile_loc[sl+(ct,)]
            d=loc[1] if loc[0]=='reg' else tmp[(2*n+ct)%4]
            dst.append(d)
            for ip in range(4):
                a.ds_read('ds_read_b64_tr_b16',d[2*ip:2*ip+2],addr,slot*4096+imm(ip,ct))
        a.wait(lgkm=0)
        for ct in range(2):
            loc=tile_loc[sl+(ct,)]
            if loc[0]=='str':
                for hf in range(2):
                    a.salu('s_add_u32',sT5,sSW,loc[1]*2048+hf*1024)
                    a.bstore('buffer_store_dwordx4',dst[ct][4*hf:4*hf+4],vL16,sWS,sT5); pend.append('s')
            elif loc[0]=='lds':
                for hf in range(2):
                    a.ds_write('ds_write_b128',vWT,dst[ct][4*hf:4*hf+4],loc[1]*2048+hf*1024)
        if n+DEPTH<len(order):
            issue(n+DEPTH); pend += [n+DEPTH]*4
    a.wait(vm=0,lgkm=0)

def stage_mem(a, G):
    t=P(20,8); ad=P(28,4); bd=P(32,4)
    for r in range(4):
        a.valu('v_perm_b32',t[2*r],G[4*1+r],G[4*0+r],sPerm)
        a.valu('v_perm_b32',t[2*r+1],G[4*3+r],G[4*2+r],sPerm)
        a.ds_write('ds_write_b64',vMWA if r==0 else ad[r],t[2*r:2*r+2])
        a.ds_write('ds_write_b16_d16_hi',vMWB if r==0 else bd[r],G[16+r])
def stage_addr(a):
    ad=P(28,4); bd=P(32,4)
    for r in range(1,4):
        a.valu('v_xor_b32',ad[r],16*r,vMWA); a.valu('v_xor_b32',bd[r],16*r,vMWB)

def stream_load(a,tile,dst):
    if 'nostream' in EXP: return
    idx=tile_loc[tile][1]
    if 'mod' in EXP: idx=idx%int(EXP.split('mod')[1].split('_')[0])
    for hf in range(2):
        a.bload('buffer_load_dwordx4',dst[4*hf:4*hf+4],vL16,sWS,sSWb[idx//2],off=(idx%2)*2048+hf*1024)
def lds_load(a,tile,dst):
    idx=tile_loc[tile][1]
    for hf in range(2): a.ds_read('ds_read_b128',dst[4*hf:4*hf+4],vWT,idx*2048+hf*1024)

def merge_pair(a,D0,D1,out):
    for r in range(4): a.valu('v_permlane32_swap_b32',D0[r],D1[r])
    for r in range(0,4,2): a.valu('v_pk_add_f32',out[r:r+2],D0[r:r+2],D1[r:r+2])
def zero(a,R_):
    for k in range(0,R_.n,2): a.valu('v_mov_b64',R_[k:k+2],0)
def xlane(a,op,x,tmp):
    a.valu('v_mov_b32',tmp,x); a.valu('v_permlane32_swap_b32',x,tmp); a.valu(op,x,x,tmp)
    a.valu('v_mov_b32',tmp,x); a.valu('v_permlane16_swap_b32',x,tmp); a.valu(op,x,x,tmp)

def batch1(a):
    X=[P(52+8*i,8) for i in range(3)]
    for n_ in range(3): stream_load(a,STREAM[n_],X[n_])

def chain_loop(a, st, tagname, D1=0, D2=0, fs=lambda a,k:None, post_pub=None, pre_dma=None):
    lb=lambda n:f"L_{tagname}_{n}"
    acc={'q':P(76,4),'k':P(4,4),'v':P(8,4)}
    acc={'q':P(0,4),'k':P(4,4),'v':P(8,4)}
    Ar=[P(12+4*i,4) for i in range(6)]; LL=[P(36,8),P(44,8)]; X=[P(52+8*i,8) for i in range(3)]
    KXo=LKX-LMEM; VXo=LVX-LMEM
    def trfrag(D,base,k4):
        for hh in range(2): a.ds_read('ds_read_b64_tr_b16',D[2*hh:2*hh+2],vQEr,base+512*k4+256*hh)
    a.label(lb('top'))
    zero(a,P(0,12))
    a.wait(lgkm=0); a.barrier()
    fs(a,0)
    if 'commonly' in EXP:
        a.salu('s_cmp_eq_u32',sStep,63,ndst=0); a.branch('s_cbranch_scc1',lb('exit'))
        for i in range(5):
            a.valu('v_bfi_b32',P(48),sBM,vNEG,P(48))
            a.bstore('buffer_store_dwordx2',P(48,2),vPst,sWS,sPst[i],mods=st)
        for k in range(1,11): fs(a,k)
        a.branch('s_branch',lb('skip'))
    for k in range(6): a.ds_read('ds_read_b128',Ar[k],vMEMr,k*512)
    lds_load(a,('q',1,0),LL[0]); lds_load(a,('q',1,1),LL[1])
    first_str=[True]
    def tile_op(m,ka):
        t=(m,ka//2,ka%2); loc=tile_loc[t]
        if loc[0]=='reg': B=loc[1]
        elif loc[0]=='lds': B=LL[ka%2]
        else:
            B=X[loc[1]%3]
            if loc[1]<3 and first_str[0]:
                a.wait(vm=0); first_str[0]=False
        a.smfmac(acc[m],Ar[ka%6],B,vIdx)
        if loc[0]=='lds' and ka+4<20: lds_load(a,('q',(ka+4)//2,ka%2),LL[ka%2])
        if loc[0]=='str' and loc[1]+3<9: stream_load(a,STREAM[loc[1]+3],X[loc[1]%3])
    for ka in range(20):
        tile_op('q',ka); tile_op('k',ka)
        if ka<14:
            tile_op('v',ka)
            a.ds_read('ds_read_b128',Ar[ka%6],vMEMr,(ka+6)*512)
        if ka in (0,9,19): fs(a,{0:1,9:2,19:3}[ka])
        if ka==13:
            publish(a,P(76,4))
            if post_pub: post_pub(a)
            a.salu('s_add_u32',sKMVo,sKMVo,32*4096)
            prefetch_kv(a,vJunk)
    KFx={(T,k4):P(36+4*(2*k4+T-1),4) for k4 in range(4) for T in (1,2)}
    def kfx(T,k4): a.ds_read('ds_read_b128',KFx[(T,k4)],vFR,KXo+((T-1)*4+k4)*1024)
    tile_op('v',14)
    kfx(1,0); kfx(2,0)
    tile_op('v',15)
    for m,off in (('q',0),('k',2048)):
        q_=acc[m]
        a.valu('v_cvt_pk_bf16_f32',q_[0],q_[0],q_[1]); a.valu('v_cvt_pk_bf16_f32',q_[1],q_[2],q_[3])
        a.ds_write('ds_write_b64',vQEw,q_[0:2],off)
    kfx(1,1); kfx(2,1); kfx(1,2); kfx(2,2)
    fs(a,4)
    a.wait(lgkm=4); a.barrier()
    fs(a,5)
    QF=[P(0,4),P(4,4),P(76,4),P(64,4)]
    QF=[P(0,4),P(4,4),P(76,4),P(72,4)]
    KF0=[Ar[(14+k)%6] for k in range(4)]
    Sacc=[KFx[(1,0)],Ar[18%6],Ar[19%6]]
    trfrag(QF[0],0,0); trfrag(QF[1],0,1); trfrag(KF0[0],2048,0); trfrag(KF0[1],2048,1)
    tile_op('v',16)
    trfrag(QF[2],0,2); trfrag(KF0[2],2048,2); kfx(1,3); kfx(2,3)
    tile_op('v',17)
    trfrag(KF0[3],2048,3)
    tile_op('v',18); tile_op('v',19)
    trfrag(QF[3],0,3)
    fs(a,6)
    order=[(T,k4) for k4 in range(4) for T in (1,2)]
    VXF=[KFx[o] for o in order[1:]]+[P(68,4)]
    a.ds_read('ds_read_b128',VXF[7],vFR,VXo+7*1024)
    nvx=0
    v_=acc['v']
    for (T,k4) in order:
        a.mfma('v_mfma_f32_16x16x32_bf16',Sacc[T],KFx[(T,k4)],QF[k4],Sacc[T] if k4 else '0')
        if (T,k4)==(1,0):
            for k in range(4): a.valu('v_mov_b32',Sacc[0][k],vNEG)
        else:
            a.ds_read('ds_read_b128',VXF[nvx],vFR,VXo+nvx*1024); nvx+=1
        if (T,k4)==(1,1):
            a.valu('v_cvt_pk_bf16_f32',v_[0],v_[0],v_[1]); a.valu('v_cvt_pk_bf16_f32',v_[1],v_[2],v_[3])
            a.ds_write('ds_write_b64',vQEw,v_[0:2],4096)
    for k4 in range(4): a.mfma('v_mfma_f32_16x16x32_bf16',Sacc[0],KF0[k4],QF[k4],Sacc[0])
    fs(a,7)
    X3=[P(20,8),P(28,8),P(72,8)]
    OS=STREAM[9:]
    Px=P(8,4); Pm=P(80,2); mx=P(80); tm=P(81)
    s_=[Sacc[T][r] for T in range(3) for r in range(4)]
    a.valu('v_max3_f32',mx,s_[4],s_[5],s_[6]); a.valu('v_max3_f32',tm,s_[7],s_[8],s_[9])
    a.valu('v_max3_f32',mx,mx,s_[10],s_[11])
    a.wait(lgkm=0); a.barrier()
    a.salu('s_cmp_eq_u32',sStep,63,ndst=0); a.branch('s_cbranch_scc1',lb('last'))
    VE=[P(0,2),P(2,2),P(4,2),P(6,2),VXF[0][0:2],VXF[0][2:4],VXF[1][0:2],VXF[1][2:4]]
    for et in range(4): a.ds_read('ds_read_b64',VE[et],vVEr,et*256)
    a.valu('v_max3_f32',tm,tm,s_[0],s_[1])
    a.valu('v_max3_f32',mx,mx,s_[2],s_[3]); a.valu('v_max_f32',mx,mx,tm)
    a.valu('v_mov_b32',tm,mx); stream_load(a,OS[0],X3[0]); a.valu('v_permlane32_swap_b32',mx,tm); a.valu('v_max_f32',mx,mx,tm)
    a.valu('v_mov_b32',tm,mx); stream_load(a,OS[1],X3[1]); a.valu('v_permlane16_swap_b32',mx,tm); a.valu('v_max_f32',mx,mx,tm)
    a.valu('v_mul_f32',mx,sC[0],mx)
    for T in range(3):
        for h2 in range(2): a.valu('v_pk_fma_f32',Sacc[T][2*h2:2*h2+2],Sacc[T][2*h2:2*h2+2],sC,P(80,2),mods='op_sel_hi:[1,1,0] neg_lo:[0,0,1] neg_hi:[0,0,1]')
    for x in s_: a.valu('v_exp_f32',x,x)
    sm=Px[0:2]; rs=Px[2:4]
    a.valu('v_pk_add_f32',sm,Sacc[0][0:2],Sacc[0][2:4])
    for T in (1,2):
        a.valu('v_pk_add_f32',sm,sm,Sacc[T][0:2]); a.valu('v_pk_add_f32',sm,sm,Sacc[T][2:4])
    a.valu('v_add_f32',sm[0],sm[0],sm[1])
    a.valu('v_mov_b32',tm,sm[0]); stream_load(a,OS[2],X3[2]); a.valu('v_permlane32_swap_b32',sm[0],tm); a.valu('v_add_f32',sm[0],sm[0],tm)
    a.valu('v_mov_b32',tm,sm[0]); a.valu('v_permlane16_swap_b32',sm[0],tm); a.valu('v_add_f32',sm[0],sm[0],tm)
    a.valu('v_rcp_f32',rs[0],sm[0])
    for T in (1,2,0):
        for h2 in range(2): a.valu('v_pk_mul_f32',Sacc[T][2*h2:2*h2+2],Sacc[T][2*h2:2*h2+2],rs,mods='op_sel_hi:[1,0]')
    for T,o in ((1,0),(2,2)):
        for h2 in range(2): a.valu('v_cvt_pk_bf16_f32',Px[o+h2],Sacc[T][2*h2],Sacc[T][2*h2+1])
    for h2 in range(2): a.valu('v_cvt_pk_bf16_f32',Pm[h2],Sacc[0][2*h2],Sacc[0][2*h2+1])
    fs(a,8)
    O=[Sacc[1],Sacc[2],Sacc[0]]+[VXF[k] for k in range(2,7)]
    for et in range(8):
        a.mfma('v_mfma_f32_16x16x32_bf16',O[et],VXF[et],Px,'0')
        if et<2:
            a.ds_read('ds_read_b64',VE[4+2*et],vVEr,(4+2*et)*256); a.ds_read('ds_read_b64',VE[5+2*et],vVEr,(5+2*et)*256)
    fs(a,9)
    def cvt(et):
        d=O[et&~1]; o=2*(et&1)
        a.valu('v_cvt_pk_bf16_f32',d[o],O[et][0],O[et][1]); a.valu('v_cvt_pk_bf16_f32',d[o+1],O[et][2],O[et][3])
    A2=[O[0],O[2],O[4],O[6]]
    oacc=[Px,O[1],O[3],O[5],O[7]]
    LO=[P(0,8),R('v',VXF[0].i,8)]
    for et in range(8):
        a.mfma('v_mfma_f32_16x16x16_bf16',O[et],VE[et],Pm,O[et])
        if et==0: zero(a,Px)
        if et>=3: cvt(et-3)
        if et==4:
            lds_load(a,('o',1,0,0),LO[0])
    lds_load(a,('o',1,0,1),LO[1])
    fs(a,10)
    a.barrier()
    def fin(i):
        c=oacc[i]
        a.valu('v_cvt_pk_bf16_f32',c[0],c[0],c[1]); a.valu('v_cvt_pk_bf16_f32',c[1],c[2],c[3])
        a.valu('v_bfi_b32',c[0],sBM,vNEG,c[0])
        a.bstore('buffer_store_dwordx2',c[0:2],vPst,sWS,sPst[i],mods=st)
    for i in range(5):
        for k2 in range(2):
            for c2 in range(2):
                t=('o',i,k2,c2); loc=tile_loc[t]
                B=loc[1] if loc[0]=='reg' else (LO[c2] if loc[0]=='lds' else X3[OS.index(t)])
                a.smfmac(oacc[i],A2[2*k2+c2],B,vIdx)
                if loc[0]=='lds' and i+1<=3: lds_load(a,('o',i+1,0,c2),LO[c2])
                n_=2*k2+c2
                if i==0:
                    if n_==0: cvt(5)
                    if n_==1: cvt(6); cvt(7)
                    if n_==2: zero(a,O[1])
                    if n_==3: zero(a,O[3])
                if i==1 and n_==0: zero(a,O[5])
                if i==1 and n_==1: zero(a,O[7])
                if i>=1 and n_==2: fin(i-1)
    fin(4)
    a.label(lb('skip'))
    fs(a,11)
    a.salu('s_add_u32',sStep,sStep,1)
    a.salu('s_add_u32',sKXo,sKXo,32*8192); a.salu('s_add_u32',sVXo,sVXo,32*8192)
    a.valu('v_xor_b32',vNEG,sBM,vNEG)
    a.salu('s_cmp_ge_u32',sUnit,80,ndst=0); a.branch('s_cbranch_scc1',lb('ag0'))
    Sel=P(40,4); m_=P(44); one=P(45)
    mk_mst(a)
    a.valu('v_lshrrev_b32',m_,4,vL16); a.valu('v_and_b32',m_,15,m_)
    a.valu('v_and_b32',one,1,m_); a.valu('v_lshlrev_b32',one,4,one)
    a.valu('v_mov_b32',P(46),'0x3f80'); a.valu('v_lshlrev_b32',one,one,P(46))
    a.valu('v_lshrrev_b32',m_,1,m_)
    for k in range(4):
        a.valu('v_cmp_eq_u32','vcc',k,m_); a.valu('v_cndmask_b32',Sel[k],0,one,'vcc')
    if D1: a.raw(f"s_sleep {D1}")
    G=[P(4*i,4) for i in range(4)]
    a.label(lb('rs'))
    guard(a)
    if 'cnt' in EXP: a.salu('s_add_u32',S(4),S(4),1)
    for i in range(4): a.bload('buffer_load_dwordx4',G[i],vL16,sWS,sRSoff,off=1024*i,mods='sc1')
    x=P(64); D=P(16,4)
    a.valu('v_or3_b32',x,G[0][0],G[0][2],G[1][0]); a.valu('v_or3_b32',x,x,G[1][2],G[2][0])
    a.valu('v_or3_b32',x,x,G[2][2],G[3][0]); a.valu('v_or_b32',x,x,G[3][2])
    a.valu('v_and_b32',x,sMaskP,x); a.valu('v_cmp_ne_u32','vcc',0,x)
    for i in range(4): a.mfma('v_mfma_f32_16x16x32_bf16',D,Sel,G[i],D if i else '0')
    a.branch('s_cbranch_vccnz',lb('rs'))
    for k in range(4): a.valu('v_add_f32',D[k],D[k],D[k],mods='row_ror:8 row_mask:0xf bank_mask:0xf')
    for k in range(4): a.valu('v_cvt_pk_bf16_f32',D[k],0,D[k])
    a.valu('v_or_b32',D[0],sMask,D[0])
    a.salu('s_mov_b64','exec','0x00ff00ff')
    a.bstore('buffer_store_dwordx4',D,vMst,sWS,sMSToff,mods=st)
    a.salu('s_mov_b64','exec',-1)
    fs(a,12)
    a.salu('s_mov_b32',sT0,sTag); a.salu('s_mov_b32',sTag,sMask); a.salu('s_mov_b32',sMask,sT0)
    a.salu('s_xor_b32',sMaskP,sMaskP,sBM)
    stage_addr(a)
    if D2: a.raw(f"s_sleep {D2}")
    a.branch('s_branch',lb('ag'))
    a.label(lb('ag0'))
    a.salu('s_mov_b32',sT0,sTag); a.salu('s_mov_b32',sTag,sMask); a.salu('s_mov_b32',sMask,sT0)
    a.salu('s_xor_b32',sMaskP,sMaskP,sBM)
    stage_addr(a)
    a.salu('s_cmp_lg_u32',sW,3,ndst=0); a.branch('s_cbranch_scc1',lb('ag1'))
    if pre_dma: pre_dma(a)
    if 'nodma' not in EXP: dma_kv(a)
    if 'touch' in EXP:
        a.valu('v_lshlrev_b32',vT,3,vL16)
        a.salu('s_add_u32',sT1,sKXo,32*8192); a.salu('s_add_u32',sT2,sVXo,32*8192)
        a.bload('buffer_load_dword',vJunk,vT,sWS,sT1,mods='sc1'); a.bload('buffer_load_dword',vJunk,vT,sWS,sT2,mods='sc1')
    a.branch('s_branch',lb('ag'))
    a.label(lb('ag1'))
    if D1+D2: a.raw(f"s_sleep {D1+D2+6}")
    a.label(lb('ag'))
    guard(a)
    if 'cnt' in EXP: a.salu('s_add_u32',S(5),S(5),1)
    G=P(0,20)
    for i in range(5): a.bload('buffer_load_dwordx4',G[4*i:4*i+4],vL16,sWS,sAG[i],mods='sc1')
    x=P(76)
    a.valu('v_or3_b32',x,G[0],G[4],G[8]); a.valu('v_or3_b32',x,x,G[12],G[16])
    a.valu('v_and_b32',x,sMask,x); a.valu('v_cmp_ne_u32','vcc',0,x)
    a.branch('s_cbranch_vccnz',lb('ag'))
    fs(a,13)
    stage_mem(a,G)
    batch1(a)
    a.branch('s_branch',lb('top'))
    a.label(lb('last'))
    publish(a,P(76,4))
    if post_pub: post_pub(a)
    a.label(lb('exit'))

def chain_first(a):
    G=P(0,20); u=P(64); rh=P(65); off=P(66)
    a.valu('v_lshrrev_b32',u,1,vT); a.valu('v_and_b32',rh,1,vT)
    a.salu('s_movk_i32',sT0,4*1280); a.valu('v_mul_lo_u32',off,rh,sT0); a.valu('v_lshl_add_u32',off,u,1,off)
    for k in range(20): a.valu('v_mov_b32',G[k],0)
    for r in range(4):
        a.salu('s_movk_i32',sT1,r*1280)
        for i in range(5):
            a.bload('buffer_load_short_d16_hi',G[4*i+r],off,sM0,sT1,off=i*256).rd |= set(G[4*i+r].regs())
    a.wait(vm=0)
    stage_addr(a)
    stage_mem(a,G)
    batch1(a)
```

```python
from chain import *
def FLG(i): return FL+128*i
O_CHT=FLG(0); O_CHBAR=FLG(1); O_TASK=FLG(2); O_PROG=FLG(3)
O_RB=FLG(8)
O_AT=FLG(32)
NFLG=96
F_LN=0; F_KV=5; F_Q=11; F_H=17
sTask=S(60); sWv_=S(61); sA=S(62); sB=S(63); sCn=S(64); sD=S(65); sE=S(66); sF=S(67)
sWo_=S(68); sAo=S(69); sK=S(70); sOut=S(71); sRB=S(72); sG=S(73); sLB=S(74); sRow=S(75); sI=S(76); sJ=S(77)
sWo2=S(78); sAst=S(79)
pL16=V(1); pW0=V(2); pW1=V(3); pTR=[V(4+i) for i in range(8)]; pT=[V(12+i) for i in range(12)]
pLane=V(24); pG=V(25); pN=V(26)
WFb=28
AFb=92
def WF(b,ct): return V(WFb+32*b+4*ct,4)
def AF(b,tt): return V(AFb+32*b+4*tt,4)
def ACC(ct,tt,NT): return A(4*(ct*NT+tt),4)

def par_setup(a):
    a.valu('v_and_b32',pLane,63,vT)
    a.valu('v_lshrrev_b32',pT[0],6,vT); a.valu('v_readfirstlane_b32',sWv_,pT[0])
    a.valu('v_lshlrev_b32',pL16,4,pLane)
    a.valu('v_lshrrev_b32',pG,4,pLane); a.valu('v_and_b32',pN,15,pLane)
    a.salu('s_lshl_b32',sLB,sWv_,15)
    a.valu('v_lshrrev_b32',pT[0],2,pLane); a.valu('v_and_b32',pT[1],7,pT[0]); a.valu('v_and_b32',pT[2],3,pLane)
    a.valu('v_lshlrev_b32',pT[0],8,pT[0]); a.valu('v_lshl_add_u32',pT[0],pT[1],5,pT[0]); a.valu('v_lshl_add_u32',pT[0],pT[2],3,pT[0])
    for ct in range(8):
        a.valu('v_xor_b32',pT[1],32*ct,pT[0]); a.valu('v_add_u32',pTR[ct],sLB,pT[1])

def set_wstride(a,rs):
    a.salu('s_mov_b32',sA,rs)
    a.valu('v_mul_lo_u32',pT[0],pG,sA)
    for j,dst in ((0,pW0),(1,pW1)):
        a.valu('v_lshlrev_b32',pT[1],1,pG);
        if j: a.valu('v_add_u32',pT[1],8,pT[1])
        a.valu('v_xor_b32',pT[1],pT[1],pN); a.valu('v_lshl_add_u32',dst,pT[1],4,pT[0])

def gemm_core(a,name,NT,srdW,rs,nk,formT=True,act_stride=None,zero_acc=True):
    if zero_acc:
        for r in range(0,32*NT): a.valu('v_accvgpr_write_b32',A(r),0)
    def dma(slot):
        for j in range(8):
            a.salu('s_add_u32','m0',sLB,slot*8192+j*1024)
            a.salu('s_add_u32',sA,sWo_,4*j*rs)
            a.bload_lds('buffer_load_dwordx4',pW1 if j&1 else pW0,srdW,sA)
        a.salu('s_add_u32',sWo_,sWo_,32*rs)
    def act(b):
        a.salu('s_mov_b32',sB,sAo)
        for tt in range(NT):
            a.bload('buffer_load_dwordx4',AF(b,tt),pL16,sWS,sB,mods='sc1')
            if tt+1<NT: a.salu('s_add_u32',sB,sB,sAst)
        a.salu('s_add_u32',sAo,sAo,1024)
    def trs(b,slot):
        for ct in range(8):
            for hh in range(2): a.ds_read('ds_read_b64_tr_b16',WF(b,ct)[2*hh:2*hh+2],pTR[ct],slot*8192+hh*4096)
    dma(0); act(0); dma(1); act(1); dma(2)
    a.wait(vm=2*NT+16 if 2*NT+16<64 else 63); trs(0,0)
    a.salu('s_mov_b32',sK,0)
    a.label(f'L_{name}_loop')
    for u in range(4):
        a.wait(vm=8+ (NT if False else 0) + 0 if False else 8+NT-NT+0, lgkm=0) if False else None
        a.wait(vm=NT+8,lgkm=0)
        def mm():
            for ct in range(8):
                for tt in range(NT):
                    if formT: a.mfma('v_mfma_f32_16x16x32_bf16',ACC(ct,tt,NT),WF(u%2,ct),AF(u,tt),ACC(ct,tt,NT))
                    else: a.mfma('v_mfma_f32_16x16x32_bf16',ACC(ct,tt,NT),AF(u,tt),WF(u%2,ct),ACC(ct,tt,NT))
        def side():
            trs((u+1)%2,(u+1)%4); act((u+2)%4); dma((u+3)%4)
        m_=a.capture(mm); s_=a.capture(side)
        a.put(weave(m_,s_,per=max(1,-(-len(s_)//max(1,len(m_)-2)))))
    a.salu('s_add_u32',sK,sK,4); a.salu('s_cmp_lt_u32',sK,nk,ndst=0); a.branch('s_cbranch_scc1',f'L_{name}_loop')
    a.wait(vm=0,lgkm=0)
    a.nop(7); a.nop(7)

def rd_acc(a,dst,q):
    for r in range(4): a.valu('v_accvgpr_read_b32',dst[r],q[r])

uid=[0]
def signal(a,dw,val):
    uid[0]+=1; l=f'L_sig{uid[0]}'
    a.wait(vm=0); a.barrier()
    a.salu('s_cmp_lg_u32',sWv_,0,ndst=0); a.branch('s_cbranch_scc1',l)
    a.valu('v_mov_b32',pT[0],val); a.valu('v_mov_b32',pT[1],0)
    a.salu('s_mov_b64','exec',1)
    a.batomic('buffer_atomic_add',pT[0],pT[1],sWS,dw,mods='sc1')
    a.salu('s_mov_b64','exec',-1)
    a.label(l)
def wait_field(a,dw,shift_s,mask,need,slp=16):
    uid[0]+=1; l=f'L_wf{uid[0]}'; l2=l+'d'
    a.salu('s_cmp_lg_u32',sWv_,0,ndst=0); a.branch('s_cbranch_scc1',l2)
    a.valu('v_mov_b32',pT[1],0)
    a.label(l)
    guard(a)
    a.bload('buffer_load_dword',pT[0],pT[1],sWS,dw,mods='sc1')
    a.valu('v_lshrrev_b32',pT[0],shift_s,pT[0]); a.valu('v_and_b32',pT[0],mask,pT[0])
    a.valu('v_cmp_le_u32','vcc',need,pT[0])
    a.branch('s_cbranch_vccnz',l2)
    a.raw(f's_sleep {slp}')
    a.branch('s_branch',l)
    a.label(l2)
    a.barrier()

def bf16r(a,dst_pk,x0,x1): a.valu('v_cvt_pk_bf16_f32',dst_pk,x0,x1)
def unpk(a,lo,hi,pk):
    a.valu('v_lshlrev_b32',lo,16,pk); a.valu('v_and_b32',hi,'0xffff0000',pk)

def task_ln(a):
    X_=[[V(28+16*rr+k) for k in range(12)] for rr in range(2)]; RAW=[V(60,6),V(66,6)]
    s1=V(72); t=V(73); mean=V(74); o=V(76,2); vo=V(78); so=[V(79),V(80),V(81)]; mb=V(82); rstd=V(83)
    a.valu('v_lshlrev_b32',vo,3,pLane)
    a.valu('v_cmp_gt_u32',S(90,2),32,pLane)
    a.salu('s_lshl_b32',sA,sI,3); a.salu('s_lshl_b32',sB,sWv_,1); a.salu('s_add_u32',sRow,sA,sB)
    a.salu('s_mul_i32',sA,sRow,1280)
    for rr in range(2):
        raw=RAW[rr]
        a.valu('v_mov_b64',raw[4:6],0)
        a.bload('buffer_load_dwordx2',raw[0:2],vo,sX,sA,off=1280*rr); a.bload('buffer_load_dwordx2',raw[2:4],vo,sX,sA,off=1280*rr+512)
    a.salu('s_mov_b64','exec',S(90,2))
    for rr in range(2): a.bload('buffer_load_dwordx2',RAW[rr][4:6],vo,sX,sA,off=1280*rr+1024).rd|=set(RAW[rr][4:6].regs())
    a.salu('s_mov_b64','exec',-1)
    for i in range(3):
        a.valu('v_add_u32',t,64*i,pLane)
        a.valu('v_lshrrev_b32',so[i],3,t); a.valu('v_lshlrev_b32',so[i],10,so[i])
        a.valu('v_and_b32',s1,3,t); a.valu('v_lshl_add_u32',so[i],s1,8,so[i])
        a.valu('v_bfe_u32',s1,t,2,1); a.valu('v_lshl_add_u32',so[i],s1,3,so[i])
    a.salu('s_lshr_b32',sA,sRow,4); a.salu('s_mul_i32',sA,sA,20480); a.salu('s_and_b32',sB,sRow,15); a.salu('s_lshl_b32',sB,sB,4); a.salu('s_add_u32',sA,sA,sB); a.salu('s_add_u32',sOut,sA,XN)
    def wsum(dst):
        for sh in (8,4,2,1): a.valu('v_add_f32',dst,dst,dst,mods=f'row_ror:{sh} row_mask:0xf bank_mask:0xf')
        xlane(a,'v_add_f32',dst,t)
    for rr in range(2):
        x=X_[rr]; raw=RAW[rr]
        for k in range(6): unpk(a,x[2*k],x[2*k+1],raw[k])
        a.valu('v_add_f32',s1,x[0],x[1])
        for k in range(2,12): a.valu('v_add_f32',s1,s1,x[k])
        wsum(s1)
        a.valu('v_mul_f32',mean,'0x3acccccd',s1)
        a.valu('v_sub_f32',t,x[0],mean); a.valu('v_mul_f32',s1,t,t)
        for k in range(1,8): a.valu('v_sub_f32',t,x[k],mean); a.valu('v_fmac_f32',s1,t,t,rmw=True)
        a.valu('v_mov_b32',rstd,0)
        for k in range(8,12): a.valu('v_sub_f32',t,x[k],mean); a.valu('v_fmac_f32',rstd,t,t,rmw=True)
        a.valu('v_cndmask_b32',rstd,0,rstd,S(90,2)); a.valu('v_add_f32',s1,s1,rstd)
        wsum(s1)
        a.valu('v_mul_f32',s1,'0x3acccccd',s1)
        bf16r(a,t,mean,s1); unpk(a,mb,s1,t)
        a.valu('v_add_f32',s1,'0x3727c5ac',s1); bf16r(a,t,s1,s1); a.valu('v_lshlrev_b32',s1,16,t)
        a.valu('v_sqrt_f32',s1,s1); bf16r(a,t,s1,s1); a.valu('v_lshlrev_b32',s1,16,t)
        a.valu('v_rcp_f32',rstd,s1)
        for i in range(3):
            for k in range(4): a.valu('v_sub_f32',x[4*i+k],x[4*i+k],mb)
            for k in range(0,4,2):
                bf16r(a,t,x[4*i+k],x[4*i+k+1]); unpk(a,x[4*i+k],x[4*i+k+1],t)
            for k in range(4):
                xx=x[4*i+k]
                a.valu('v_mul_f32',mean,xx,rstd); a.valu('v_fma_f32',xx,'-'+str(mean),s1,xx); a.valu('v_fma_f32',xx,xx,rstd,mean)
            bf16r(a,o[0],x[4*i],x[4*i+1]); bf16r(a,o[1],x[4*i+2],x[4*i+3])
            if i==2: a.salu('s_mov_b64','exec',S(90,2))
            a.bstore('buffer_store_dwordx2',o,so[i],sWS,sOut,off=16*rr,mods='sc1')
            if i==2: a.salu('s_mov_b64','exec',-1)

def rb_off(a,dst): a.salu('s_lshl_b32',dst,sRB,7); a.salu('s_add_u32',dst,dst,O_RB)

def epi_T(a,NT,store):
    q=[V(28,4),V(32,4)]; o=[V(36,4),V(40,4)]; n=0
    for tt in range(NT):
        for k4 in range(4):
            oo=o[n%2]; n+=1
            for h in range(2):
                rd_acc(a,q[h],ACC(2*k4+h,tt,NT))
                bf16r(a,oo[2*h],q[h][0],q[h][1]); bf16r(a,oo[2*h+1],q[h][2],q[h][3])
            store(tt,k4,oo)

def task_kq(a,name,srd,dest,field):
    set_wstride(a,8192)
    a.salu('s_lshl_b32',sWo_,sJ,8)
    a.salu('s_mul_i32',sAo,sRB,8*20480); a.salu('s_add_u32',sAo,sAo,XN); a.salu('s_mov_b32',sAst,20480); a.salu('s_mov_b32',sCn,20)
    gemm_core(a,name,8,srd,8192,sCn,True)
    a.salu('s_lshl_b32',sOut,sRB,7); a.salu('s_add_u32',sOut,sOut,sJ); a.salu('s_lshl_b32',sOut,sOut,13); a.salu('s_add_u32',sOut,sOut,dest)
    def st(tt,k4,oo):
        a.salu('s_add_u32',sA,sOut,(tt//2)*32*8192+(tt%2)*4096)
        a.bstore('buffer_store_dwordx4',oo,pL16,sWS,sA,off=k4*1024,mods='sc1')
    epi_T(a,8,st)
    rb_off(a,sD); signal(a,sD,1<<field)
def task_v(a):
    set_wstride(a,8192)
    a.salu('s_lshl_b32',sWo_,sJ,8)
    a.salu('s_mul_i32',sAo,sRB,8*20480); a.salu('s_add_u32',sAo,sAo,XN); a.salu('s_mov_b32',sAst,20480); a.salu('s_mov_b32',sCn,20)
    gemm_core(a,'gv',8,sWv,8192,sCn,False)
    a.salu('s_lshl_b32',sOut,sRB,7); a.salu('s_add_u32',sOut,sOut,sJ); a.salu('s_lshl_b32',sOut,sOut,13); a.salu('s_add_u32',sOut,sOut,VX)
    q=[V(28,4),V(32,4)]; o=[V(36,4),V(40,4)]; n=0
    for sg in range(4):
        for et in range(8):
            oo=o[n%2]; n+=1
            for h in range(2):
                rd_acc(a,q[h],ACC(et,2*sg+h,8))
                bf16r(a,oo[2*h],q[h][0],q[h][1]); bf16r(a,oo[2*h+1],q[h][2],q[h][3])
            a.salu('s_add_u32',sA,sOut,sg*32*8192+(et//4)*4096)
            a.bstore('buffer_store_dwordx4',oo,pL16,sWS,sA,off=(et%4)*1024,mods='sc1')
    rb_off(a,sD); signal(a,sD,1<<F_KV)

HKS=56
def task_f1(a):
    uid[0]+=1; l=f'L_f1skip{uid[0]}'
    set_wstride(a,3456)
    a.salu('s_cmp_ge_u32',sJ,14,ndst=0); a.branch('s_cbranch_scc1',l)
    a.salu('s_lshl_b32',sWo_,sJ,8)
    a.salu('s_mul_i32',sAo,sRB,8*20480); a.salu('s_add_u32',sAo,sAo,XN); a.salu('s_mov_b32',sAst,20480); a.salu('s_mov_b32',sCn,20)
    gemm_core(a,'gf',8,sW1,3456,sCn,True)
    bias=V(44,32); bb=V(76,16); ok=V(92)
    a.valu('v_lshlrev_b32',pT[2],3,pG); a.salu('s_lshl_b32',sA,sJ,8)
    for ct in range(8): a.bload('buffer_load_dwordx2',bb[2*ct:2*ct+2],pT[2],sB1,sA,off=32*ct)
    for ct in range(8):
        unpk(a,bias[4*ct],bias[4*ct+1],bb[2*ct]); unpk(a,bias[4*ct+2],bias[4*ct+3],bb[2*ct+1])
    a.salu('s_mul_i32',sOut,sRB,8*HKS*1024); a.salu('s_lshl_b32',sA,sJ,12); a.salu('s_add_u32',sOut,sOut,sA); a.salu('s_add_u32',sOut,sOut,HF)
    a.salu('s_cmp_eq_u32',sJ,13,ndst=0); a.salu('s_cselect_b32',sE,0,-1)
    q=[V(28,4),V(32,4)]; o=[V(36,4),V(40,4)]; n=0; t=V(93)
    for tt in range(8):
        for k4 in range(4):
            oo=o[n%2]; n+=1
            for h in range(2):
                qq=q[h]; rd_acc(a,qq,ACC(2*k4+h,tt,8))
                for p in range(2):
                    bf16r(a,t,qq[2*p],qq[2*p+1]); unpk(a,qq[2*p],qq[2*p+1],t)
                    a.valu('v_add_f32',qq[2*p],qq[2*p],bias[4*(2*k4+h)+2*p]); a.valu('v_add_f32',qq[2*p+1],qq[2*p+1],bias[4*(2*k4+h)+2*p+1])
                    bf16r(a,t,qq[2*p],qq[2*p+1]); unpk(a,qq[2*p],qq[2*p+1],t)
                    a.valu('v_max_f32',qq[2*p],0,qq[2*p]); a.valu('v_max_f32',qq[2*p+1],0,qq[2*p+1])
                    a.valu('v_mul_f32',qq[2*p],qq[2*p],qq[2*p]); a.valu('v_mul_f32',qq[2*p+1],qq[2*p+1],qq[2*p+1])
                    bf16r(a,oo[2*h+p],qq[2*p],qq[2*p+1])
                    if k4>=2: a.valu('v_and_b32',oo[2*h+p],sE,oo[2*h+p])
            a.salu('s_add_u32',sA,sOut,tt*HKS*1024)
            a.bstore('buffer_store_dwordx4',oo,pL16,sWS,sA,off=k4*1024,mods='sc1')
    a.label(l)
    rb_off(a,sD); signal(a,sD,1<<F_H)

def task_at(a):
    uid[0]+=1; l=f'L_atw{uid[0]}'
    a.salu('s_lshr_b32',sRB,sI,2); rb_off(a,sD)
    wait_field(a,sD,F_Q,63,8); wait_field(a,sD,F_KV,63,16)
    QF=[[V(28+4*(4*u+k),4) for k in range(4)] for u in range(2)]
    KF=[[V(60+4*(4*T+k),4) for k in range(4)] for T in range(2)]
    VF=[V(92+4*e,4) for e in range(8)]
    K0=[V(124+4*k,4) for k in range(4)]
    V0=[V(140+2*e,2) for e in range(8)]
    a.salu('s_lshl_b32',sA,sI,5); a.salu('s_add_u32',sA,sA,sJ); a.salu('s_lshl_b32',sB,sA,13)
    for base,regs in ((QX,QF[0]+QF[1]),(KX,KF[0]+KF[1]),(VX,VF)):
        a.salu('s_add_u32',sE,sB,base); a.salu('s_add_u32',sF,sB,base+4096)
        for k,r in enumerate(regs): a.bload('buffer_load_dwordx4',r,pL16,sWS,sE if k<4 else sF,off=(k%4)*1024,mods='sc1')
    a.valu('v_mov_b32',pT[2],0); a.salu('s_add_u32',sE,sI,1); a.salu('s_mov_b32',sF,O_PROG)
    a.salu('s_cmp_lg_u32',sWv_,0,ndst=0); a.branch('s_cbranch_scc1',l+'d')
    a.label(l)
    guard(a)
    a.bload('buffer_load_dwordx2',V(12,2),pT[2],sWS,sF,mods='sc1')
    a.valu('v_cmp_le_i32',S(90,2),sE,pT[0]); a.valu('v_cmp_le_u32','vcc',32,pT[1])
    a.salu('s_or_b64','vcc','vcc',S(90,2))
    a.branch('s_cbranch_vccnz',l+'d')
    a.raw('s_sleep 32')
    a.branch('s_branch',l)
    a.label(l+'d')
    a.barrier()
    a.salu('s_lshl_b32',sB,sA,12); a.salu('s_add_u32',sB,sB,KMV)
    for j in range(2):
        a.salu('s_add_u32','m0',sLB,0)
        a.bload_lds('buffer_load_dwordx4',pL16,sWS,sB,off=1024*j,mods='sc1')
    g2=pT[3]; va=pT[4]; ta=pT[5]
    a.valu('v_and_b32',g2,1,pG); a.valu('v_lshlrev_b32',va,4,pN); a.valu('v_lshl_add_u32',va,g2,3,va)
    for e in range(8): a.bload('buffer_load_dwordx2',V0[e],va,sWS,sB,off=2048+256*e,mods='sc1')
    a.valu('v_lshrrev_b32',ta,2,pLane); a.valu('v_lshlrev_b32',ta,4,ta); a.valu('v_and_b32',pT[6],1,pLane); a.valu('v_lshl_add_u32',ta,pT[6],3,ta)
    a.valu('v_add_u32',ta,sLB,ta)
    a.wait(vm=0)
    for k in range(4):
        for hh in range(2): a.ds_read('ds_read_b64_tr_b16',K0[k][2*hh:2*hh+2],ta,512*k+256*hh)
    cm=[S(80+2*r,2) for r in range(4)]; m0_=S(88,2)
    for r in range(4):
        a.valu('v_lshl_add_u32',pT[6],pG,2,r); a.valu('v_cmp_gt_u32',cm[r],pT[6],pN)
    a.valu('v_cmp_le_u32',m0_,2,pG)
    NEG=pT[7]; a.valu('v_mov_b32',NEG,'0xce6e6b28')
    Sq={}; base=156
    for u in range(2):
        for T in range(3):
            if (T,u)==(2,0): continue
            Sq[(T,u)]=V(base,4); base+=4
            for k in range(4):
                src=K0[k] if T==0 else KF[T-1][k]
                a.mfma('v_mfma_f32_16x16x32_bf16',Sq[(T,u)],src,QF[u][k],Sq[(T,u)] if k else '0')
    t=pT[8]; mx=pT[9]; sm=pT[10]; tm=pT[11]
    Pq={}
    a.salu('s_mov_b32',sE,'0x3db504f3'); a.salu('s_mov_b32',sF,'0x3fb8aa3b')
    for u in range(2):
        Ts=[T for T in range(3) if (T,u) in Sq]
        vals=[]
        for T in Ts:
            q=Sq[(T,u)]
            for p in range(2):
                bf16r(a,t,q[2*p],q[2*p+1]); unpk(a,q[2*p],q[2*p+1],t)
                a.valu('v_mul_f32',q[2*p],sE,q[2*p]); a.valu('v_mul_f32',q[2*p+1],sE,q[2*p+1])
                bf16r(a,t,q[2*p],q[2*p+1]); unpk(a,q[2*p],q[2*p+1],t)
            for r in range(4):
                if T==0: a.valu('v_cndmask_b32',q[r],q[r],NEG,m0_)
                elif T==u+1: a.valu('v_cndmask_b32',q[r],q[r],NEG,cm[r])
                vals.append(q[r])
        a.valu('v_max_f32',mx,vals[0],vals[1])
        for k in range(2,len(vals),2): a.valu('v_max3_f32',mx,mx,vals[k],vals[k+1])
        xlane(a,'v_max_f32',mx,tm)
        for x in vals:
            a.valu('v_sub_f32',x,x,mx); a.valu('v_mul_f32',x,sF,x); a.valu('v_exp_f32',x,x)
        for r in range(4): a.valu('v_cndmask_b32',Sq[(0,u)][r],Sq[(0,u)][r],0,m0_)
        a.valu('v_add_f32',sm,vals[0],vals[1])
        for x in vals[2:]: a.valu('v_add_f32',sm,sm,x)
        xlane(a,'v_add_f32',sm,tm)
        a.valu('v_rcp_f32',sm,sm)
        for x in vals: a.valu('v_mul_f32',x,x,sm)
        px=V(176+6*u,4); pm=V(180+6*u,2); Pq[u]=(px,pm)
        for T,o in ((1,0),(2,2)):
            for h2 in range(2):
                if (T,u) in Sq: bf16r(a,px[o+h2],Sq[(T,u)][2*h2],Sq[(T,u)][2*h2+1])
                else: a.valu('v_mov_b32',px[o+h2],0)
        for h2 in range(2): bf16r(a,pm[h2],Sq[(0,u)][2*h2],Sq[(0,u)][2*h2+1])
    a.salu('s_lshl_b32',sA,sI,1); a.salu('s_lshl_b32',sA,sA,5); a.salu('s_add_u32',sA,sA,sJ); a.salu('s_lshl_b32',sA,sA,12); a.salu('s_add_u32',sOut,sA,OX)
    for u in range(2):
        px,pm=Pq[u]
        O=[V(28+4*e,4) for e in range(8)] if u==0 else [V(188+4*e,4) for e in range(8)]
        if u==0: O=[V(60+4*e,4) for e in range(8)]
        for e in range(8): a.mfma('v_mfma_f32_16x16x32_bf16',O[e],VF[e],px,'0')
        for e in range(8): a.mfma('v_mfma_f32_16x16x16_bf16',O[e],V0[e],pm,O[e])
        for k4 in range(4):
            oo=V(28+4*(4*u+k4),4)
            for h in range(2):
                bf16r(a,oo[2*h],O[2*k4+h][0],O[2*k4+h][1]); bf16r(a,oo[2*h+1],O[2*k4+h][2],O[2*k4+h][3])
            a.salu('s_add_u32',sA,sOut,u*32*4096)
            a.bstore('buffer_store_dwordx4',oo,pL16,sWS,sA,off=k4*1024,mods='sc1')
    a.salu('s_lshl_b32',sA,sI,7); a.salu('s_add_u32',sD,sA,O_AT)
    signal(a,sD,1)

def task_fin(a):
    set_wstride(a,1280)
    rho=pT[2]; c=pT[3]; r7=pT[4]; b=pT[5]
    a.valu('v_lshrrev_b32',rho,2,pLane); a.valu('v_and_b32',c,3,pLane); a.valu('v_and_b32',r7,7,rho)
    a.valu('v_lshlrev_b32',b,8,rho); a.valu('v_and_b32',pT[6],1,c); a.valu('v_lshl_add_u32',b,pT[6],4,b); a.valu('v_add_u32',b,sLB,b)
    a.valu('v_lshrrev_b32',c,1,c)
    for ct in range(8):
        a.valu('v_add_u32',pT[6],2*(ct//2),c); a.valu('v_xor_b32',pT[6],pT[6],r7); a.valu('v_lshl_add_u32',pT[6],pT[6],5,b)
        a.valu('v_add_u32',pTR[ct],8*(ct%2),pT[6])
    a.salu('s_lshr_b32',sRB,sI,2); rb_off(a,sD); wait_field(a,sD,F_H,15,4)
    a.salu('s_lshl_b32',sE,sWv_,4); a.salu('s_cmp_eq_u32',sWv_,3,ndst=0); a.salu('s_cselect_b32',sE,44,sE)
    a.salu('s_cmp_ge_u32',sWv_,2,ndst=0); a.salu('s_cselect_b32',sCn,12,16)
    a.salu('s_mul_i32',sWo_,sE,32*1280); a.salu('s_lshl_b32',sA,sJ,8); a.salu('s_add_u32',sWo_,sWo_,sA)
    a.salu('s_mul_i32',sAo,sI,2*HKS*1024); a.salu('s_lshl_b32',sA,sE,10); a.salu('s_add_u32',sAo,sAo,sA); a.salu('s_add_u32',sAo,sAo,HF)
    a.salu('s_mov_b32',sAst,HKS*1024)
    gemm_core(a,'g2',2,sW2,1280,sCn,True)
    for r in range(64):
        a.valu('v_accvgpr_read_b32',pT[2],A(r)); a.valu('v_accvgpr_write_b32',A(64+r),pT[2])
    a.salu('s_lshl_b32',sA,sI,7); a.salu('s_add_u32',sD,sA,O_AT)
    wait_field(a,sD,0,15,8,slp=8)
    a.salu('s_mul_i32',sWo_,sWv_,1024*1280); a.salu('s_lshl_b32',sA,sJ,8); a.salu('s_add_u32',sWo_,sWo_,sA)
    a.salu('s_lshl_b32',sAo,sI,18); a.salu('s_lshl_b32',sA,sWv_,15); a.salu('s_add_u32',sAo,sAo,sA); a.salu('s_add_u32',sAo,sAo,OX)
    a.salu('s_mov_b32',sAst,131072); a.salu('s_mov_b32',sCn,32)
    gemm_core(a,'go',2,sWo,1280,sCn,True)
    a.valu('v_add_u32',pT[2],sLB,pL16)
    for qi in range(32): a.ds_write('ds_write_b128',pT[2],A(4*qi,4),qi*1024)
    a.wait(lgkm=0); a.barrier()
    a.salu('s_lshl_b32',sA,sWv_,12); a.valu('v_add_u32',pT[2],sA,pL16)
    xo=pT[3]; a.salu('s_movk_i32',sA,1280); a.valu('v_mul_lo_u32',xo,pN,sA); a.valu('v_lshl_add_u32',xo,pG,4,xo)
    a.salu('s_mul_i32',sE,sI,32*1280); a.salu('s_lshl_b32',sA,sJ,8); a.salu('s_add_u32',sE,sE,sA); a.salu('s_lshl_b32',sB,sWv_,6); a.salu('s_add_u32',sE,sE,sB)
    a.salu('s_add_u32',sF,sE,16*1280)
    xr=[V(28,4),V(32,4)]; b2=V(36,4); bo=pT[4]
    a.bload('buffer_load_dwordx4',xr[0],xo,sX,sE); a.bload('buffer_load_dwordx4',xr[1],xo,sX,sF)
    a.valu('v_lshlrev_b32',bo,4,pG); a.salu('s_add_u32',sA,sA,sB); a.bload('buffer_load_dwordx4',b2,bo,sB2,sA)
    bias=V(40,8)
    for k in range(4): unpk(a,bias[2*k],bias[2*k+1],b2[k])
    for tt in range(2):
        S_=[V(48,4),V(52,4)]; F_=[V(56,4),V(60,4)]; tmp=[V(64+4*k,4) for k in range(4)]
        for st_,dst in ((0,S_),(1,F_)):
            for h in range(2):
                for wv in range(4):
                    off=wv*32768+(st_*16+h*2+tt)*1024
                    if off<65536: a.ds_read('ds_read_b128',tmp[wv],pT[2],off)
                    else:
                        a.valu('v_add_u32',pT[5],65536,pT[2]); a.ds_read('ds_read_b128',tmp[wv],pT[5],off-65536)
                for r in range(4):
                    a.valu('v_add_f32',dst[h][r],tmp[0][r],tmp[1][r]); a.valu('v_add_f32',tmp[2][r],tmp[2][r],tmp[3][r]); a.valu('v_add_f32',dst[h][r],dst[h][r],tmp[2][r])
        o=V(80,4); t=V(84); e0=V(85); e1=V(86); x0=V(87); x1=V(88)
        a.salu('s_mov_b32',sA,'0xbfb8aa3b')
        for k in range(4):
            s0,s1=S_[k//2][2*(k%2)],S_[k//2][2*(k%2)+1]; f0,f1=F_[k//2][2*(k%2)],F_[k//2][2*(k%2)+1]
            bf16r(a,t,s0,s1); unpk(a,s0,s1,t)
            bf16r(a,t,f0,f1); unpk(a,f0,f1,t)
            a.valu('v_add_f32',f0,f0,bias[2*k]); a.valu('v_add_f32',f1,f1,bias[2*k+1])
            bf16r(a,t,f0,f1); unpk(a,f0,f1,t)
            for f,e in ((f0,e0),(f1,e1)):
                a.valu('v_mul_f32',e,sA,f); a.valu('v_exp_f32',e,e); a.valu('v_add_f32',e,1.0,e); a.valu('v_rcp_f32',e,e); a.valu('v_mul_f32',f,f,e)
            bf16r(a,t,f0,f1); unpk(a,f0,f1,t)
            a.valu('v_mul_f32',s0,s0,f0); a.valu('v_mul_f32',s1,s1,f1)
            bf16r(a,t,s0,s1); unpk(a,s0,s1,t)
            unpk(a,x0,x1,xr[tt][k])
            a.valu('v_add_f32',s0,s0,x0); a.valu('v_add_f32',s1,s1,x1)
            bf16r(a,o[k],s0,s1)
        a.bstore('buffer_store_dwordx4',o,xo,sOUT,sE if tt==0 else sF)
    a.wait(lgkm=0); a.barrier()
    par_setup(a)
```

```python
import sys
from par import *
KN='recurrent_scan__memory_aug_recurrent_mem_tr__dense_activation_squared_relu__prompt_kernel'
D1,D2=2,4
a=Asm()
PROF=os.environ.get('PROF','')=='1'
def prof(dw,op='buffer_atomic_umax',vr=(V(20),V(21))):
    if not PROF: return
    a.raw("s_memrealtime s[98:99]",wr=['s98','s99'],kind='smem'); a.wait(lgkm=0)
    a.valu('v_mov_b32',vr[0],S(98)); a.valu('v_mov_b32',vr[1],4*dw)
    a.salu('s_mov_b64','exec',1)
    a.batomic(op,vr[0],vr[1],sDBG,'0',mods='sc1')
    a.salu('s_mov_b64','exec',-1)
K0='rs_pro_kernel'
a.label(K0)
a.salu('s_cmp_ge_u32',S(2),256,ndst=0); a.branch('s_cbranch_scc1','L_end0')
load_srds(a)
par_setup(a)
a.salu('s_cmp_lg_u32',S(2),0,ndst=0); a.branch('s_cbranch_scc1','L_nz')
for k in range(4): a.valu('v_mov_b32',V(12+k),0)
a.valu('v_lshlrev_b32',V(16),4,vT); a.salu('s_mov_b32',sA,FL)
for k in range(NFLG*128//4096): a.bstore('buffer_store_dwordx4',V(12,4),V(16),sWS,sA); a.salu('s_add_u32',sA,sA,4096)
a.label('L_nz')
a.salu('s_mov_b32',sI,S(2)); task_ln(a)
a.label('L_end0')
a.raw('s_endpgm')
a.raw('.p2align 8',kind='comment').text='.p2align 8'
a.label(KN)
a.salu('s_cmp_ge_u32',S(2),256,ndst=0); a.branch('s_cbranch_scc1','L_end')
load_srds(a)
a.salu('s_mov_b32',S(101),0)
a.raw("s_getreg_b32 s3, hwreg(HW_REG_XCC_ID)",wr=['s3'],kind='salu')
a.salu('s_and_b32',S(3),S(3),15)
t=V(12); z=V(13); sv=S(4,2)
def bcast_atomic(off,val,dst):
    a.valu('v_mov_b32',t,val); a.valu('v_mov_b32',z,off)
    a.valu('v_cmp_eq_u32','vcc',0,vT); a.salu('s_and_saveexec_b64',sv,'vcc')
    lbl=f'L_ba{len(a.ins)}'
    a.branch('s_cbranch_execz',lbl)
    a.batomic('buffer_atomic_add',t,z,sWS,'0',ret=True,mods='sc1')
    a.wait(vm=0)
    a.valu('v_mov_b32',z,163832); a.ds_write('ds_write_b32',z,t)
    a.label(lbl)
    a.salu('s_mov_b64','exec',sv)
    a.wait(lgkm=0); a.barrier()
    a.valu('v_mov_b32',z,163832); a.ds_read('ds_read_b32',t,z); a.wait(lgkm=0)
    a.valu('v_readfirstlane_b32',dst,t)
    a.barrier()
prof(55)
a.salu('s_cmp_lg_u32',S(3),0,ndst=0); a.branch('s_cbranch_scc1','L_par')
bcast_atomic(O_CHT,1,sH)
a.salu('s_cmp_lt_u32',sH,32,ndst=0); a.branch('s_cbranch_scc1','L_chain')
a.label('L_par')
par_setup(a)
a.branch('s_branch','L_deq')
a.label('L_next')
a.valu('v_mov_b32',z,O_CHT)
a.salu('s_cmp_lg_u32',sWv_,0,ndst=0); a.branch('s_cbranch_scc1','L_fb0')
a.bload('buffer_load_dword',t,z,sWS,'0',mods='sc1')
a.valu('v_mov_b32',z,163828); a.ds_write('ds_write_b32',z,t)
a.label('L_fb0')
a.wait(lgkm=0); a.barrier()
a.valu('v_mov_b32',z,163828); a.ds_read('ds_read_b32',t,z); a.wait(lgkm=0); a.valu('v_readfirstlane_b32',sA,t)
a.salu('s_cmp_ge_u32',sA,32,ndst=0); a.branch('s_cbranch_scc1','L_deq')
bcast_atomic(O_CHT,1,sH)
a.salu('s_cmp_lt_u32',sH,32,ndst=0); a.branch('s_cbranch_scc1','L_chain')
par_setup(a)
a.label('L_deq')
bcast_atomic(O_TASK,1,sTask)
a.salu('s_add_u32',sTask,sTask,128)
a.salu('s_cmp_lt_u32',sTask,384,ndst=0); a.branch('s_cbranch_scc0','L_t2')
a.salu('s_sub_u32',sA,sTask,128); a.salu('s_lshr_b32',sRB,sA,4); a.salu('s_and_b32',sA,sA,15)
a.salu('s_and_b32',sB,sA,7); a.salu('s_lshl_b32',sB,sB,2); a.salu('s_add_u32',sJ,sB,sWv_)
a.salu('s_cmp_ge_u32',sA,8,ndst=0); a.branch('s_cbranch_scc1','L_tv')
task_kq(a,'gk',sWk,KX,F_KV); prof(61); a.branch('s_branch','L_next')
a.label('L_tv'); task_v(a); a.branch('s_branch','L_next')
a.label('L_t2')
a.salu('s_cmp_lt_u32',sTask,576,ndst=0); a.branch('s_cbranch_scc0','L_t3')
a.salu('s_sub_u32',sA,sTask,384); a.salu('s_mul_hi_u32',sRB,sA,'0x15555556'); a.salu('s_mul_i32',sB,sRB,12); a.salu('s_sub_u32',sA,sA,sB)
a.salu('s_and_b32',sB,sA,7); a.salu('s_lshl_b32',sB,sB,2); a.salu('s_add_u32',sJ,sB,sWv_)
a.salu('s_cmp_ge_u32',sA,8,ndst=0); a.branch('s_cbranch_scc1','L_tf')
task_kq(a,'gq',sWq,QX,F_Q); a.branch('s_branch','L_next')
a.label('L_tf'); task_f1(a); prof(62); a.branch('s_branch','L_next')
a.label('L_t3')
a.salu('s_cmp_lt_u32',sTask,576+66*13,ndst=0); a.branch('s_cbranch_scc0','L_end')
a.salu('s_sub_u32',sA,sTask,576); a.salu('s_mul_hi_u32',sI,sA,'0x13b13b14'); a.salu('s_mul_i32',sB,sI,13); a.salu('s_sub_u32',sA,sA,sB)
a.salu('s_cmp_ge_u32',sA,8,ndst=0); a.branch('s_cbranch_scc1','L_tfin')
a.salu('s_cmp_ge_u32',sI,64,ndst=0); a.branch('s_cbranch_scc1','L_next')
a.salu('s_lshl_b32',sB,sA,2); a.salu('s_add_u32',sJ,sB,sWv_)
task_at(a); a.branch('s_branch','L_next')
a.label('L_tfin')
a.salu('s_cmp_lt_u32',sI,2,ndst=0); a.branch('s_cbranch_scc1','L_next')
a.salu('s_sub_u32',sI,sI,2); a.salu('s_sub_u32',sJ,sA,8)
task_fin(a); prof(60); a.branch('s_branch','L_next')
a.label('L_chain')
prof(56)
chain_setup(a)
chain_init_comm(a)
a.wait(vm=0); a.barrier()
a.salu('s_lshl_b32',sT0,1,S(3))
a.valu('v_mov_b32',P(0),sT0); a.valu('v_mov_b32',P(1),O_CHBAR+4); a.valu('v_mov_b32',P(2),1); a.valu('v_mov_b32',P(3),O_CHBAR)
a.salu('s_cmp_lg_u32',sW,0,ndst=0); a.branch('s_cbranch_scc1','L_ch0')
a.salu('s_mov_b64','exec',1)
a.batomic('buffer_atomic_or',P(0),P(1),sWS,'0',mods='sc1'); a.wait(vm=0)
a.batomic('buffer_atomic_add',P(2),P(3),sWS,'0',mods='sc1')
a.salu('s_mov_b64','exec',-1)
a.label('L_ch0')
chain_load_weights(a)
prof(57,vr=(P(70),P(71)))
cuid=[0]
def kv_wait(a,first=False):
    cuid[0]+=1; l=f'L_kvw{cuid[0]}'
    if not first:
        a.salu('s_and_b32',sT0,sStep,3); a.salu('s_cmp_lg_u32',sT0,0,ndst=0); a.branch('s_cbranch_scc1',l+'d')
    a.salu('s_and_b32',sT0,sStep,0xfc); a.salu('s_lshl_b32',sT0,sT0,5); a.salu('s_add_u32',sT0,sT0,O_RB)
    a.valu('v_mov_b32',P(41),0)
    a.label(l)
    guard(a)
    a.bload('buffer_load_dword',P(40),P(41),sWS,sT0,mods='sc1')
    a.valu('v_bfe_u32',P(40),P(40),F_KV,6); a.valu('v_cmp_le_u32','vcc',16,P(40))
    a.branch('s_cbranch_vccnz',l+'d')
    a.raw('s_sleep 4'); a.branch('s_branch',l)
    a.label(l+'d')
a.salu('s_cmp_lg_u32',sW,3,ndst=0); a.branch('s_cbranch_scc1','L_nodma0')
kv_wait(a,True); dma_kv(a); a.wait(vm=0)
a.label('L_nodma0')
a.valu('v_mov_b32',P(4),O_CHBAR)
a.label('L_arr')
guard(a)
a.bload('buffer_load_dwordx2',P(0,2),P(4),sWS,'0',mods='sc1')
a.valu('v_cmp_gt_u32','vcc',32,P(0))
a.branch('s_cbranch_vccnz','L_arr')
a.valu('v_readfirstlane_b32',S(6),P(1))
chain_first(a)
prof(58,vr=(P(76),P(77)))
def pre_dma(a):
    cuid[0]+=1; l=f'L_pg{cuid[0]}'
    a.salu('s_cmp_lg_u32',sH,0,ndst=0); a.branch('s_cbranch_scc1',l)
    a.salu('s_sub_u32',sT0,sStep,3); a.valu('v_mov_b32',P(42),sT0); a.valu('v_mov_b32',P(43),O_PROG)
    a.salu('s_mov_b64','exec',1)
    a.bstore('buffer_store_dword',P(42),P(43),sWS,'0',mods='sc1')
    a.salu('s_mov_b64','exec',-1)
    a.label(l)
    kv_wait(a)
a.salu('s_bcnt1_i32_b32',sT0,S(6)); a.salu('s_cmp_lg_u32',sT0,1,ndst=0); a.branch('s_cbranch_scc1','L_slow')
chain_loop(a,'','f',D1,D2,pre_dma=pre_dma)
a.branch('s_branch','L_chend')
a.label('L_slow')
chain_loop(a,'sc1','s',D1,D2,pre_dma=pre_dma)
a.label('L_chend')
prof(59,vr=(P(70),P(71)))
a.wait(vm=0); a.barrier()
a.salu('s_cmp_lg_u32',sW,0,ndst=0); a.branch('s_cbranch_scc1','L_end')
a.valu('v_mov_b32',P(0),1); a.valu('v_mov_b32',P(1),O_PROG+4)
a.salu('s_mov_b64','exec',1)
a.batomic('buffer_atomic_add',P(0),P(1),sWS,'0',mods='sc1')
a.label('L_end')
a.raw('s_endpgm')
a.auto_wait(); a.hazards()
ref=open('recurrent_scan__memory_aug_recurrent_mem_tr__dense_activation_squared_relu__prompt.s.ref').read()
hdr=ref[:ref.index('; Override launch geometry')]+f"""; @launch kernel={K0} grid=(256,1,1) block=(256,1,1) lds=0
; @launch kernel={KN} grid=(256,1,1) block=(256,1,1) lds=163840
.amdgcn_target "amdgcn-amd-amdhsa--gfx950"
.text
.globl {KN}
.type {KN},@function
.globl {K0}
.type {K0},@function
.p2align 8
"""
ftr=f"""
.section .rodata,"a"
.p2align 6
.amdhsa_kernel {K0}
  .amdhsa_next_free_vgpr 96
  .amdhsa_next_free_sgpr 102
  .amdhsa_accum_offset 96
  .amdhsa_group_segment_fixed_size 0
  .amdhsa_kernarg_size 120
  .amdhsa_user_sgpr_count 2
  .amdhsa_user_sgpr_kernarg_segment_ptr 1
  .amdhsa_system_sgpr_workgroup_id_x 1
.end_amdhsa_kernel
.p2align 6
.amdhsa_kernel {KN}
  .amdhsa_next_free_vgpr 512
  .amdhsa_next_free_sgpr 102
  .amdhsa_accum_offset 256
  .amdhsa_group_segment_fixed_size 0
  .amdhsa_kernarg_size 120
  .amdhsa_user_sgpr_count 2
  .amdhsa_user_sgpr_kernarg_segment_ptr 1
  .amdhsa_system_sgpr_workgroup_id_x 1
.end_amdhsa_kernel
"""
out=sys.argv[1] if len(sys.argv)>1 else 'recurrent_scan__memory_aug_recurrent_mem_tr__dense_activation_squared_relu__prompt.s'
open(out,'w').write(hdr+a.text()+ftr)
print(len(a.ins),'instructions')
```

```python
import re

class R:
    def __init__(s, f, i, n=1): s.f, s.i, s.n = f, i, n
    def __str__(s):
        return f"{s.f}{s.i}" if s.n == 1 else f"{s.f}[{s.i}:{s.i+s.n-1}]"
    def regs(s): return [f"{s.f}{s.i+k}" for k in range(s.n)]
    def __getitem__(s, k):
        if isinstance(k, slice):
            st = k.start or 0; en = k.stop if k.stop is not None else s.n
            return R(s.f, s.i+st, en-st)
        return R(s.f, s.i+k, 1)
def V(i, n=1): return R('v', i, n)
def A(i, n=1): return R('a', i, n)
def S(i, n=1): return R('s', i, n)

def regs_of(x):
    if isinstance(x, R): return x.regs()
    if isinstance(x, str):
        if x in ('vcc',): return ['vcc']
        if x in ('exec',): return ['exec']
        if x == 'm0': return ['m0']
        if x.startswith('-') or x.startswith('abs('):
            m = re.search(r'([vas])(\d+)', x)
            if m: return [m.group(0)]
        if re.fullmatch(r'[vas]\d+', x): return [x]
    return []

TRANS = ('v_exp_f32','v_log_f32','v_rcp_f32','v_rsq_f32','v_sqrt_f32','v_sin_f32','v_cos_f32')

class Ins:
    __slots__ = ('text','rd','wr','kind','passes','srcC','label','target','wide','pend','note')
    def __init__(s, text, rd=(), wr=(), kind='other', passes=0, srcC=(), label=None, target=None, wide=False):
        s.text, s.rd, s.wr, s.kind, s.passes, s.srcC = text, set(rd), set(wr), kind, passes, tuple(srcC)
        s.label, s.target, s.wide = label, target, wide

class Asm:
    def __init__(s): s.ins = []; s.out = s.ins
    def raw(s, text, **kw): i = Ins(text, **kw); s.out.append(i); return i
    def label(s, name): s.raw(f"{name}:", kind='label', label=name)
    def comment(s, t): return s.raw(f"; {t}", kind='comment')
    def _ops(s, ops): return ", ".join(str(o) for o in ops)
    def valu(s, op, *ops, ndst=1, mods='', rmw=False):
        wr = []; rd = []
        for o in ops[:ndst]: wr += regs_of(o)
        for o in ops[ndst:]: rd += regs_of(o)
        if rmw: rd += wr
        kind = 'trans' if op in TRANS else 'valu'
        if op.startswith('v_permlane'): kind = 'permlane'; rd += wr; wr += regs_of(ops[1])
        if op.startswith('v_readfirstlane') or op.startswith('v_readlane'): kind = 'readlane'
        if 'dpp' in mods or 'row_' in mods or 'quad_perm' in mods: kind = 'dpp'
        if op.startswith('v_cndmask') and len(ops) == 3: rd.append('vcc')
        rd.append('exec')
        return s.raw(f"{op} {s._ops(ops)}{(' '+mods) if mods else ''}", rd=rd, wr=wr, kind=kind)
    def salu(s, op, *ops, ndst=1):
        wr = []; rd = []
        for o in ops[:ndst]: wr += regs_of(o)
        for o in ops[ndst:]: rd += regs_of(o)
        return s.raw(f"{op} {s._ops(ops)}", rd=rd, wr=wr, kind='salu')
    def mfma(s, op, D, Aop, Bop, C, passes=4):
        rd = regs_of(Aop) + regs_of(Bop) + regs_of(C)
        return s.raw(f"{op} {D}, {Aop}, {Bop}, {C}", rd=rd, wr=regs_of(D), kind='mfma', passes=passes, srcC=regs_of(C))
    def smfmac(s, D, Aop, Bop, idx, op='v_smfmac_f32_16x16x64_bf16'):
        rd = regs_of(Aop) + regs_of(Bop) + regs_of(idx) + regs_of(D)
        return s.raw(f"{op} {D}, {Aop}, {Bop}, {idx}", rd=rd, wr=regs_of(D), kind='mfma', passes=4, srcC=regs_of(D))
    def ds_read(s, op, D, addr, off=0):
        return s.raw(f"{op} {D}, {addr}" + (f" offset:{off}" if off else ''), rd=regs_of(addr), wr=regs_of(D), kind='dsread')
    def ds_write(s, op, addr, D, off=0):
        return s.raw(f"{op} {addr}, {D}" + (f" offset:{off}" if off else ''), rd=regs_of(addr)+regs_of(D), kind='dswrite')
    def bload(s, op, D, voff, srd, soff, off=0, mods=''):
        t = f"{op} {D}, {voff}, {srd}, {soff} offen" + (f" offset:{off}" if off else '') + ((' '+mods) if mods else '')
        return s.raw(t, rd=regs_of(voff)+regs_of(srd)+regs_of(soff), wr=regs_of(D), kind='vmload')
    def bload_lds(s, op, voff, srd, soff, off=0, mods=''):
        t = f"{op} {voff}, {srd}, {soff} offen" + (f" offset:{off}" if off else '') + ((' '+mods) if mods else '') + " lds"
        return s.raw(t, rd=regs_of(voff)+regs_of(srd)+regs_of(soff)+['m0'], kind='vmdma')
    def bstore(s, op, D, voff, srd, soff, off=0, mods=''):
        t = f"{op} {D}, {voff}, {srd}, {soff} offen" + (f" offset:{off}" if off else '') + ((' '+mods) if mods else '')
        return s.raw(t, rd=regs_of(D)+regs_of(voff)+regs_of(srd)+regs_of(soff), kind='vmstore', wide=('x4' in op or 'x3' in op))
    def batomic(s, op, D, voff, srd, soff, off=0, ret=False, mods=''):
        t = f"{op} {D}, {voff}, {srd}, {soff} offen" + (f" offset:{off}" if off else '') + (' sc0' if ret else '') + ((' '+mods) if mods else '')
        return s.raw(t, rd=regs_of(D)+regs_of(voff)+regs_of(srd)+regs_of(soff), wr=regs_of(D) if ret else [], kind='vmload' if ret else 'vmstore')
    def wait(s, vm=None, lgkm=None):
        t = "s_waitcnt" + (f" vmcnt({vm})" if vm is not None else '') + (f" lgkmcnt({lgkm})" if lgkm is not None else '')
        i = s.raw(t, kind='wait'); i.note = (vm, lgkm); return i
    def barrier(s): return s.raw("s_barrier", kind='barrier')
    def nop(s, n=0): return s.raw(f"s_nop {n}", kind='nop', passes=n+1)
    def branch(s, op, target):
        rd = {'s_cbranch_vccz':['vcc'],'s_cbranch_vccnz':['vcc'],'s_cbranch_execz':['exec'],'s_cbranch_execnz':['exec']}.get(op, [])
        return s.raw(f"{op} {target}", rd=rd, kind='branch', target=target)
    def capture(s, fn):
        old = s.out; s.out = []; fn(); r = s.out; s.out = old; return r
    def put(s, lst): s.out.extend(lst)

    def auto_wait(s):
        out = []; vm = []; lg = []
        for i in s.ins:
            if i.kind in ('label',):
                vm = []; lg = []
            touched = i.rd | i.wr
            need_vm = None; need_lg = None
            if i.kind not in ('label','plabel','comment','wait','nop'):
                for k, d in enumerate(vm):
                    if d & touched: need_vm = len(vm) - 1 - k
                for k, d in enumerate(lg):
                    if d & touched: need_lg = len(lg) - 1 - k
            if need_vm is not None or need_lg is not None:
                if need_vm is not None and need_vm > 63: need_vm = 63
                if need_lg is not None and need_lg > 15: need_lg = 15
                t = "s_waitcnt" + (f" vmcnt({need_vm})" if need_vm is not None else '') + (f" lgkmcnt({need_lg})" if need_lg is not None else '')
                w = Ins(t, kind='wait'); out.append(w)
                if need_vm is not None: vm = vm[len(vm)-need_vm:] if need_vm else []
                if need_lg is not None: lg = lg[len(lg)-need_lg:] if need_lg else []
            if i.kind == 'wait':
                a, b = i.note
                if a is not None: vm = vm[len(vm)-a:] if a and a < len(vm) else ([] if not a else vm)
                if b is not None: lg = lg[len(lg)-b:] if b and b < len(lg) else ([] if not b else lg)
            if i.kind == 'vmload': vm.append(set(i.wr))
            elif i.kind in ('vmstore','vmdma'): vm.append(set())
            elif i.kind == 'dsread': lg.append(set(i.wr))
            elif i.kind == 'dswrite': lg.append(set())
            elif i.kind == 'smem': lg.append(set(i.wr)); lg.append(set(i.wr))
            out.append(i)
        s.ins = out; s.out = s.ins

    def _need(s, p, c):
        n = 0
        isv = lambda k: k in ('valu','trans','permlane','readlane','dpp')
        pw = p.wr;
        if isv(p.kind):
            vw = {r for r in pw if r[0] in 'va' and r != 'vcc'}
            sw = {r for r in pw if r[0] == 's' or r == 'vcc'}
            if c.kind == 'mfma' and vw & c.rd: n = max(n, 2)
            if c.kind == 'permlane' and vw & c.rd: n = max(n, 2)
            if c.kind == 'dpp' and vw & c.rd: n = max(n, 2)
            if c.kind == 'readlane' and vw & c.rd: n = max(n, 1)
            if p.kind == 'trans' and isv(c.kind) and c.kind != 'trans' and vw & (c.rd | c.wr): n = max(n, 1)
            if p.kind == 'trans' and c.kind in ('mfma','vmstore','dswrite') and vw & c.rd: n = max(n, 2)
            if sw:
                if isv(c.kind) and sw & c.rd: n = max(n, 4 if c.kind == 'readlane' else 2)
                if c.kind in ('vmload','vmstore','vmdma') and sw & c.rd: n = max(n, 5)
            if 'exec' in pw:
                if c.kind == 'dpp': n = max(n, 5)
                if c.kind in ('mfma','readlane','permlane'): n = max(n, 4)
        if p.kind == 'mfma':
            T = {4:(0,6,8,8,3), 8:(0,10,12,12,7), 2:(2,4,5,5,1), 16:(0,18,20,20,15)}[p.passes]
            D = pw
            if c.kind == 'mfma':
                cC = set(c.srcC); cAB = c.rd - cC
                if D & cC:
                    if D == cC and c.passes == p.passes and c.text.split()[0] == p.text.split()[0]: n = max(n, T[0])
                    else: n = max(n, T[1])
                ab = set()
                for r in c.rd:
                    if r not in cC: ab.add(r)
                if D & ab: n = max(n, T[2])
                if D & c.wr and not (D & cC): n = max(n, T[1])
            elif c.kind not in ('label','comment','nop','wait','branch','salu','barrier'):
                if D & (c.rd | c.wr): n = max(n, T[3])
            if isv(c.kind) and set(p.srcC) & c.wr: n = max(n, T[4])
        if p.kind == 'vmstore' and p.wide:
            data = {r for r in p.rd if r[0] in 'va'}
            if data & c.wr: n = max(n, 2 if isv(c.kind) else 1)
        if p.kind == 'salu' and 'm0' in pw and 'm0' in c.rd: n = max(n, 1)
        return n
    def hazards(s):
        LOOK = 24
        src = s.ins
        ins = list(src)
        k = 0
        def index():
            labels = {(i.label or i.text[:-1]): n for n, i in enumerate(ins) if i.kind in ('label','plabel')}
            preds = {}
            for n, i in enumerate(ins):
                if i.kind == 'branch' and i.target in labels: preds.setdefault(labels[i.target], []).append(n)
            return preds
        preds = index()
        while k < len(ins):
            c = ins[k]
            if c.kind in ('label','plabel','comment','nop','wait'): k += 1; continue
            worst = 0
            stack = [(k-1, 0)]; seen = set()
            while stack:
                p, d = stack.pop()
                while p >= 0 and d < LOOK:
                    if (p, d) in seen: break
                    seen.add((p, d))
                    pi = ins[p]
                    if pi.kind in ('label','plabel'):
                        for q in preds.get(p, []): stack.append((q, d))
                        p -= 1; continue
                    if pi.kind == 'comment': p -= 1; continue
                    if pi.text.startswith('s_endpgm'): break
                    need = s._need(pi, c)
                    if need - d > worst: worst = need - d
                    d += pi.passes if pi.kind == 'nop' else 1
                    p -= 1
            if worst > 0:
                ins.insert(k, Ins(f"s_nop {worst-1}", kind='nop', passes=worst))
                preds = index()
                k += 1
            k += 1
        s.ins = ins; s.out = s.ins
    def text(s):
        o = []
        for i in s.ins:
            o.append(i.text if i.kind in ('label','plabel') else "    " + i.text)
        return "\n".join(o) + "\n"

def weave(main, side, start=0, per=None):
    out = []; si = 0
    nm = max(1, len(main) - start)
    if per is None: per = -(-len(side) // nm)
    for k, m in enumerate(main):
        out.append(m)
        if k >= start:
            for _ in range(per):
                if si < len(side): out.append(side[si]); si += 1
    out.extend(side[si:])
    return out
```

```python
from asmlib import *
import os
EXP=os.environ.get('EXP','')
XN=0x0; KX=0x0400000; VX=0x1400000; QX=0x2400000; HF=0x3400000; OX=0x3C00000
KMV=0x4C20000; PB=0x5480000; MB=0x5500000; SW=0x5600000; FL=0x5A00000
WS_BYTES=268435456
LMEM=131072; LKX=LMEM+10240; LVX=LKX+8192; LQE=LVX+8192; LKE=LQE+2048; LVE=LKE+2048
sX=S(8,4); sM0=S(12,4); sWq=S(16,4); sWk=S(20,4); sWv=S(24,4); sWo=S(28,4); sW1=S(32,4); sB1=S(36,4)
sW2=S(40,4); sB2=S(44,4); sOUT=S(48,4); sDBG=S(52,4); sWS=S(56,4)
SRDS=[(sX,0,2621440),(sM0,8,10240),(sWq,16,5242880),(sWk,24,5242880),(sWv,32,5242880),(sWo,40,5242880),
      (sW1,64,2211840),(sB1,72,3456),(sW2,80,2211840),(sB2,88,1280),(sOUT,96,2621440),(sDBG,104,256),(sWS,112,WS_BYTES)]
sH=S(60); sW=S(61); sStep=S(62); sTag=S(63); sMask=S(64); sUnit=S(65); sRSoff=S(66); sMSToff=S(67)
sPst=[S(68+i) for i in range(5)]; sAG=[S(73+i) for i in range(5)]; sSW=S(78); sKXo=S(79); sKMVo=S(80); sVXo=S(81)
sHi=S(82,2); sMaskP=S(84); sBM=S(85); sT0=S(86); sT1=S(87); sT2=S(88); sT3=S(89); sC=S(90,2); sT4=S(92); sT5=S(93); sPubL=S(94); sPerm=S(95)
sSWb=[S(32+i) for i in range(6)]
sDM=[S(40+i) for i in range(4)]
vT=V(0); vWT=V(1); vMEMr=V(2); vFR=V(3); vQEr=V(4); vVEr=V(5); vQEw=V(6); vMWA=V(7)
vPst=V(8); vMst=V(12+47); vNEG=V(9); vL16=V(10); vIdx=V(11); vJunk=V(0)
PB0=12
def P(i,n=1): return V(PB0+i,n)
WV0=PB0+84

SAFE=os.environ.get('SAFE','')=='1'
def guard(a):
    if SAFE:
        a.salu('s_add_u32',S(101),S(101),1); a.salu('s_cmp_gt_u32',S(101),0x300000,ndst=0); a.branch('s_cbranch_scc1','L_end')
def load_srds(a):
    for srd,off,n in SRDS:
        a.raw(f"s_load_dwordx2 {S(srd.i,2)}, s[0:1], {off}", wr=S(srd.i,2).regs(), kind='smem')
    a.wait(lgkm=0)
    for srd,off,n in SRDS:
        a.salu('s_and_b32', srd[1], srd[1], '0xffff')
        a.salu('s_mov_b32', srd[2], str(n))
        a.salu('s_mov_b32', srd[3], '0x00020000')

LDS_SLABS=[('q',1),('q',3),('q',5),('q',7),('q',9),('o',1,0),('o',2,0),('o',3,0)]
STREAM=[('k',1,0),('k',1,1),('k',2,0),('k',2,1), ('k',8,0),('k',8,1),('k',9,0),('k',9,1),('v',9,1), ('o',4,0,1),('o',4,1,0),('o',4,1,1)]
ALL_SLABS=[(m,ks) for ks in range(10) for m in 'qk']+[('v',ks) for ks in range(10)]+[('o',i,k2) for i in range(5) for k2 in range(2)]
tile_loc={}
_res=[V(WV0+8*i,8) for i in range(20)]+[A(8*i,8) for i in range(32)]
_ri=0
for sl in ALL_SLABS:
    for ct in range(2):
        t=sl+(ct,)
        if sl in LDS_SLABS: tile_loc[t]=('lds',LDS_SLABS.index(sl)*2+ct)
        elif t in STREAM: tile_loc[t]=('str',STREAM.index(t))
        else: tile_loc[t]=('reg',_res[_ri]); _ri+=1
assert _ri==len(_res)==52, _ri

def chain_setup(a):
    L=P(0); g=P(1); n=P(2); t1=P(3); t2=P(4); t3=P(5); u=P(6)
    a.valu('v_and_b32',L,63,vT)
    a.valu('v_lshrrev_b32',t1,6,vT)
    a.valu('v_readfirstlane_b32',sW,t1)
    a.valu('v_lshrrev_b32',g,4,L)
    a.valu('v_and_b32',n,15,L)
    a.valu('v_lshlrev_b32',vL16,4,L)
    a.salu('s_lshl_b32',sT0,sW,15)
    a.valu('v_add_u32',vWT,sT0,vL16)
    a.valu('v_and_b32',t1,7,L); a.valu('v_xor_b32',t1,t1,g); a.valu('v_lshl_add_u32',t1,g,3,t1)
    a.valu('v_lshlrev_b32',t1,4,t1)
    a.valu('v_add_u32',vMEMr,LMEM,t1)
    a.valu('v_add_u32',vFR,LMEM,vL16)
    a.valu('v_lshrrev_b32',t1,2,L); a.valu('v_lshlrev_b32',t1,4,t1); a.valu('v_and_b32',t2,1,L); a.valu('v_lshl_add_u32',t1,t2,3,t1)
    a.valu('v_add_u32',vQEr,LQE,t1)
    g2=P(7); ct=P(8)
    a.valu('v_and_b32',g2,1,g); a.valu('v_lshrrev_b32',ct,1,g)
    a.valu('v_lshlrev_b32',t1,4,n); a.valu('v_lshl_add_u32',t1,g2,3,t1); a.valu('v_add_u32',vVEr,LVE,t1)
    a.valu('v_lshl_add_u32',t1,ct,8,t1)
    a.salu('s_lshl_b32',sT0,sW,9); a.salu('s_add_u32',sT0,sT0,LQE)
    a.valu('v_add_u32',vQEw,sT0,t1)
    rh=P(9); gg=P(10)
    a.valu('v_lshrrev_b32',u,1,vT); a.valu('v_and_b32',rh,1,vT)
    a.valu('v_bfe_u32',gg,u,2,2)
    a.valu('v_lshlrev_b32',t1,2,rh); a.valu('v_xor_b32',t1,t1,gg); a.valu('v_lshl_add_u32',t1,gg,3,t1)
    a.valu('v_lshlrev_b32',t1,4,t1)
    a.valu('v_lshrrev_b32',t2,4,u); a.valu('v_lshl_add_u32',t2,t2,9,t1)
    a.valu('v_and_b32',t3,3,u); a.valu('v_lshl_add_u32',t2,t3,2,t2)
    a.valu('v_add_u32',vMWA,LMEM,t2)
    a.valu('v_lshrrev_b32',t1,3,n); a.valu('v_lshl_add_u32',t1,ct,1,t1); a.valu('v_lshlrev_b32',t1,12,t1)
    a.valu('v_and_b32',t2,7,n); a.valu('v_lshl_add_u32',t1,t2,4,t1); a.valu('v_lshl_add_u32',vPst,g2,3,t1)
    a.valu('v_cmp_le_u32',sHi,8,n)
    a.valu('v_mov_b32',t1,'0x4444'); a.valu('v_mov_b32',t2,'0xeeee')
    a.valu('v_cndmask_b32',vIdx,t1,t2,sHi)
    a.valu('v_cmp_le_u32','vcc',1,ct); a.valu('v_mov_b32',t1,'0x10000'); a.valu('v_mov_b32',t2,'0xf149f2ca')
    a.valu('v_cndmask_b32',vNEG,t1,t2,'vcc')
    a.salu('s_add_u32',sUnit,sH,48); a.salu('s_cmp_eq_u32',sW,0,ndst=0); a.salu('s_cselect_b32',sUnit,sH,sUnit)
    a.salu('s_add_u32',sT0,sH,32); a.salu('s_cmp_lt_u32',sH,16,ndst=0); a.salu('s_cselect_b32',sT0,sT0,99)
    a.salu('s_cmp_eq_u32',sW,2,ndst=0); a.salu('s_cselect_b32',sUnit,sT0,sUnit)
    a.salu('s_cmp_eq_u32',sW,3,ndst=0); a.salu('s_cselect_b32',sUnit,99,sUnit)
    a.salu('s_lshl_b32',sRSoff,sUnit,12); a.salu('s_add_u32',sRSoff,sRSoff,PB)
    a.salu('s_lshl_b32',sMSToff,sUnit,8); a.salu('s_add_u32',sMSToff,sMSToff,MB)
    a.salu('s_mul_i32',sT0,sW,3*16384); a.salu('s_lshl_b32',sT1,sH,7); a.salu('s_add_u32',sT0,sT0,sT1); a.salu('s_add_u32',sPst[0],sT0,PB)
    for i in range(1,3): a.salu('s_add_u32',sPst[i],sPst[i-1],16384)
    a.salu('s_mul_i32',sT0,sW,2*16384); a.salu('s_add_u32',sT0,sT0,sT1); a.salu('s_add_u32',sPst[3],sT0,PB+12*16384); a.salu('s_add_u32',sPst[4],sPst[3],16384)
    a.salu('s_lshl_b32',sT0,sW,10)
    for i in range(5): a.salu('s_add_u32',sAG[i],sT0,MB+4096*i)
    a.salu('s_lshl_b32',sT1,sW,9); a.salu('s_add_u32',sPubL,sT1,LKE)
    a.salu('s_lshl_b32',sT0,sH,2); a.salu('s_add_u32',sT0,sT0,sW); a.salu('s_lshl_b32',sT0,sT0,15); a.salu('s_add_u32',sSW,sT0,SW)
    for i in range(6): a.salu('s_add_u32',sSWb[i],sSW,4096*i)
    a.salu('s_lshl_b32',sT0,sH,13)
    a.salu('s_add_u32',sKXo,sT0,KX); a.salu('s_add_u32',sVXo,sT0,VX)
    a.salu('s_lshl_b32',sT0,sH,12); a.salu('s_lshl_b32',sT1,sW,9); a.salu('s_add_u32',sT0,sT0,sT1); a.salu('s_add_u32',sKMVo,sT0,KMV-32*4096)
    a.salu('s_mov_b32',sC[0],'0x3e0293ee'); a.salu('s_mov_b32',sC[1],'0x3e0293ee')
    a.salu('s_lshl_b32',sDM[0],sW,11)
    a.salu('s_mov_b32',sStep,0)
    a.salu('s_mov_b32',sBM,'0x10001'); a.salu('s_mov_b32',sMaskP,1); a.salu('s_mov_b32',sPerm,'0x07060302')
    a.salu('s_mov_b32',sTag,2); a.salu('s_mov_b32',sMask,1)

def mk_mst(a):
    a.valu('v_and_b32',vMst,0xfff,vPst); a.valu('v_lshlrev_b32',vMst,1,vMst)
def chain_init_comm(a):
    one=P(0,4)
    a.valu('v_mov_b32',one[0],1); a.valu('v_mov_b32',one[1],1)
    for i in range(5): a.bstore('buffer_store_dwordx2',one[0:2],vPst,sWS,sPst[i],mods='sc1')
    a.salu('s_cmp_ge_u32',sUnit,80,ndst=0); a.branch('s_cbranch_scc1','L_ci_skip')
    for k in range(4): a.valu('v_mov_b32',P(4+k),2)
    mk_mst(a)
    a.bstore('buffer_store_dwordx4',P(4,4),vMst,sWS,sMSToff,mods='sc1')
    a.label('L_ci_skip')

def dma_kv(a):
    for k,(soff,base) in enumerate(((sKXo,LKX),(sVXo,LVX))):
        for hf in range(2):
            a.salu('s_mov_b32','m0',base+4096*hf)
            if hf: a.salu('s_add_u32',sT1,soff,4096)
            for j in range(4):
                a.bload_lds('buffer_load_dwordx4',vL16,sWS,sT1 if hf else soff,off=1024*j,mods='sc1')
def dma_part(a,soff,base,sm0):
    a.salu('s_add_u32','m0',sm0,base); a.salu('s_add_u32',sT1,soff,sm0)
    for j in range(2): a.bload_lds('buffer_load_dwordx4',vL16,sWS,sT1,off=1024*j,mods='sc1')
def spf_kv(a):
    for soff in (sKXo,sVXo):
        a.salu('s_add_u32',sT1,soff,sDM[0])
        for j in range(16):
            a.raw(f"s_buffer_load_dword {sDM[1]}, {sWS}, {sT1} offset:{128*j}" if False else f"s_buffer_load_dword {sDM[1]}, {sWS}, {sT1}",kind='other')
            if j<15: a.salu('s_add_u32',sT1,sT1,128)
def publish(a,tmp):
    if 'nopub' in EXP: return
    a.valu('v_and_b32',vT,0x1f0,vL16); a.valu('v_and_b32',tmp[0],0x200,vL16); a.valu('v_lshl_add_u32',vT,tmp[0],2,vT)
    a.valu('v_add_u32',tmp[0],sPubL,vT)
    a.ds_read('ds_read_b128',tmp,tmp[0])
    a.bstore('buffer_store_dwordx4',tmp,vT,sWS,sKMVo,mods='sc1')
def prefetch_kv(a,tmp):
    if 'nopf' in EXP: return
    a.valu('v_lshlrev_b32',vT,3,vL16)
    a.salu('s_add_u32',sT1,sKXo,32*8192); a.salu('s_add_u32',sT2,sVXo,32*8192)
    a.salu('s_bitcmp0_b32',sW,0,ndst=0); a.salu('s_cselect_b32',sT1,sT1,sT2)
    a.bload('buffer_load_dword',tmp,vT,sWS,sT1,mods='sc1')

def chain_load_weights(a):
    vq=P(0); vo=P(1); ta=P(2); tb=P(3); tc=P(4); L=P(5); gB=P(6); r=P(7); c=P(8); t1=P(9); t2=P(10)
    a.valu('v_and_b32',L,63,vT); a.valu('v_lshrrev_b32',gB,4,L); a.valu('v_bfe_u32',r,L,2,2); a.valu('v_and_b32',c,3,L)
    a.valu('v_lshrrev_b32',t1,2,L); a.valu('v_lshlrev_b32',t2,4,c)
    a.valu('v_lshl_add_u32',vq,t1,13,t2)
    a.salu('s_movk_i32',sT0,1280); a.valu('v_mul_lo_u32',t1,t1,sT0); a.valu('v_add_u32',vo,t1,t2)
    a.salu('s_lshl_b32',sT0,sW,15)
    r0=P(11); r1=P(12); b0=P(13); b1=P(14)
    a.valu('v_and_b32',r0,1,r); a.valu('v_lshrrev_b32',r1,1,r); a.valu('v_and_b32',b0,1,gB); a.valu('v_lshrrev_b32',b1,1,gB)
    cp=P(15)
    a.valu('v_lshlrev_b32',cp,3,c); a.valu('v_lshl_add_u32',cp,r1,5,cp); a.valu('v_add_u32',cp,sT0,cp)
    a.valu('v_lshlrev_b32',t1,5,r0); a.valu('v_lshl_add_u32',t1,b1,2,t1); a.valu('v_lshl_add_u32',t1,b0,1,t1); a.valu('v_lshl_add_u32',ta,t1,6,cp)
    a.valu('v_lshl_add_u32',t1,b0,4,r0); a.valu('v_lshl_add_u32',t1,b1,2,t1); a.valu('v_lshl_add_u32',tc,t1,6,cp)
    a.salu('s_lshl_b32',sT2,sH,8); a.salu('s_lshl_b32',sT1,sW,6); a.salu('s_add_u32',sT2,sT2,sT1)
    a.salu('s_mul_i32',sT3,sH,163840); a.salu('s_mul_i32',sT1,sW,192); a.salu('s_add_u32',S(44),sT3,sT1); a.salu('s_lshl_b32',sT1,sW,7); a.salu('s_add_u32',S(45),sT3,sT1)
    a.salu('s_lshl_b32',sT4,sW,15)
    order=[s for s in ALL_SLABS if s not in LDS_SLABS]+LDS_SLABS
    def slot_of(n): return (n%8) if n<32 else (n-32)
    def issue(n):
        sl=order[n]; slot=slot_of(n)
        for j in range(4):
            a.salu('s_add_u32','m0',sT4,slot*4096+j*1024)
            if sl[0]=='o':
                _,i,k2=sl
                a.salu('s_add_u32',sT5,S(44) if i<3 else S(45),(64*k2+16*j)*1280+(i*64 if i<3 else 768+(i-3)*64))
                a.bload_lds('buffer_load_dwordx4',vo,sWo,sT5)
            else:
                m,ks=sl
                d0=(128*(j//2)+32*ks+16*(j%2)) if ks<4 else ((256+64*(ks-4)+16*j) if ks<6 else (128*(3+j//2)+32*(ks-6)+16*(j%2)))
                a.salu('s_add_u32',sT5,sT2,d0*8192)
                a.bload_lds('buffer_load_dwordx4',vq,{'q':sWq,'k':sWk,'v':sWv}[m],sT5)
    tmp=[P(16,8),P(24,8),P(32,8),P(40,8)]
    DEPTH=7
    for n in range(DEPTH): issue(n)
    pend=[]
    for n in range(DEPTH): pend += [n]*4
    for n in range(len(order)):
        sl=order[n]; slot=slot_of(n)
        last=max(k for k,x in enumerate(pend) if x==n)
        a.wait(vm=min(63,len(pend)-1-last)); pend=pend[last+1:]
        if sl[0]=='o': addr=tc; imm=lambda ip,ct:(32*ct+8*(ip//2)+2*(ip%2))*64
        elif sl[1] in (4,5): addr=tc; imm=lambda ip,ct:(32*ct+8*(ip//2)+2*(ip%2))*64
        else: addr=ta; imm=lambda ip,ct:(16*ct+8*(ip//2)+(ip%2))*64
        dst=[]
        for ct in range(2):
            loc=tile_loc[sl+(ct,)]
            d=loc[1] if loc[0]=='reg' else tmp[(2*n+ct)%4]
            dst.append(d)
            for ip in range(4):
                a.ds_read('ds_read_b64_tr_b16',d[2*ip:2*ip+2],addr,slot*4096+imm(ip,ct))
        a.wait(lgkm=0)
        for ct in range(2):
            loc=tile_loc[sl+(ct,)]
            if loc[0]=='str':
                for hf in range(2):
                    a.salu('s_add_u32',sT5,sSW,loc[1]*2048+hf*1024)
                    a.bstore('buffer_store_dwordx4',dst[ct][4*hf:4*hf+4],vL16,sWS,sT5); pend.append('s')
            elif loc[0]=='lds':
                for hf in range(2):
                    a.ds_write('ds_write_b128',vWT,dst[ct][4*hf:4*hf+4],loc[1]*2048+hf*1024)
        if n+DEPTH<len(order):
            issue(n+DEPTH); pend += [n+DEPTH]*4
    a.wait(vm=0,lgkm=0)

def stage_A(a, G):
    t=P(20,4); ad=P(28,4); bd=P(32,4)
    for r in range(4):
        a.valu('v_perm_b32',t[r],G[4+r],G[r],sPerm)
        a.ds_write('ds_write_b32',vMWA if r==0 else ad[r],t[r])
        a.ds_write('ds_write_b16_d16_hi',bd[r],G[8+r])
def stage_B(a, G0, G1):
    for r in range(4): a.valu('v_perm_b32',G0[r],G1[r],G0[r],sPerm)
    for r in range(4):
        if r: a.valu('v_xor_b32',G1[r],16*r,vMWA)
        a.ds_write('ds_write_b32',vMWA if r==0 else G1[r],G0[r],12*512)
def stage_addr(a):
    ad=P(28,4); bd=P(32,4); x=P(36); y=P(37)
    a.valu('v_subrev_u32',x,LMEM,vMWA)
    a.valu('v_and_b32',bd[0],0x1f0,x); a.valu('v_bfe_u32',y,x,2,2); a.valu('v_lshl_add_u32',bd[0],y,1,bd[0])
    a.valu('v_bfe_u32',y,x,9,1); a.valu('v_lshl_add_u32',bd[0],y,3,bd[0])
    a.valu('v_lshrrev_b32',y,10,x); a.valu('v_lshl_add_u32',bd[0],y,9,bd[0]); a.valu('v_add_u32',bd[0],LMEM+8*512,bd[0])
    for r in range(1,4):
        a.valu('v_xor_b32',ad[r],16*r,vMWA); a.valu('v_xor_b32',bd[r],16*r,bd[0])

def stream_load(a,tile,dst):
    if 'nostream' in EXP: return
    idx=tile_loc[tile][1]
    if 'mod' in EXP: idx=idx%int(EXP.split('mod')[1].split('_')[0])
    for hf in range(2):
        a.bload('buffer_load_dwordx4',dst[4*hf:4*hf+4],vL16,sWS,sSWb[idx//2],off=(idx%2)*2048+hf*1024)
def lds_load(a,tile,dst):
    idx=tile_loc[tile][1]
    for hf in range(2): a.ds_read('ds_read_b128',dst[4*hf:4*hf+4],vWT,idx*2048+hf*1024)

def merge_pair(a,D0,D1,out):
    for r in range(4): a.valu('v_permlane32_swap_b32',D0[r],D1[r])
    for r in range(0,4,2): a.valu('v_pk_add_f32',out[r:r+2],D0[r:r+2],D1[r:r+2])
def zero(a,R_):
    for k in range(0,R_.n,2): a.valu('v_mov_b64',R_[k:k+2],0)
def xlane(a,op,x,tmp):
    a.valu('v_mov_b32',tmp,x); a.valu('v_permlane32_swap_b32',x,tmp); a.valu(op,x,x,tmp)
    a.valu('v_mov_b32',tmp,x); a.valu('v_permlane16_swap_b32',x,tmp); a.valu(op,x,x,tmp)

XS=[P(44+8*i,8) for i in range(5)]
def batch1(a):
    for n_ in range(4): stream_load(a,STREAM[n_],XS[n_])
def dma2(a):
    dma_part(a,sKXo,LKX,sDM[0]); dma_part(a,sVXo,LVX,sDM[0])

def chain_loop(a, st, tagname, D1=0, D2=0, fs=lambda a,k:None, post_pub=None, pre_dma=None, prog=None):
    lb=lambda n:f"L_{tagname}_{n}"
    acc={'q':P(0,4),'k':P(4,4),'v':P(8,4)}
    Ar=[P(12+4*i,4) for i in range(4)]; LL=[P(28,8),P(36,8)]; X=XS
    KXo=LKX-LMEM; VXo=LVX-LMEM
    def trfrag(D,base,k4):
        for hh in range(2): a.ds_read('ds_read_b64_tr_b16',D[2*hh:2*hh+2],vQEr,base+512*k4+256*hh)
    a.label(lb('top'))
    zero(a,P(0,12))
    a.wait(lgkm=0); a.barrier()
    fs(a,0)
    for k in range(4): a.ds_read('ds_read_b128',Ar[k],vMEMr,k*512)
    lds_load(a,('q',1,0),LL[0]); lds_load(a,('q',1,1),LL[1])
    nb2=[0]
    def tile_op(m,ka):
        t=(m,ka//2,ka%2); loc=tile_loc[t]
        if loc[0]=='reg': B=loc[1]
        elif loc[0]=='lds': B=LL[ka%2]
        else:
            n_=loc[1]; B=X[n_] if n_<4 else X[n_-4]
        a.smfmac(acc[m],Ar[ka%4],B,vIdx)
        if loc[0]=='lds' and ka+4<20: lds_load(a,('q',(ka+4)//2,ka%2),LL[ka%2])
        if loc[0]=='str' and loc[1]<4: stream_load(a,STREAM[loc[1]+4],X[loc[1]]); nb2[0]+=1
    GB=[P(76,4),P(80,4)]
    for ka in range(20):
        tile_op('q',ka); tile_op('k',ka)
        if ka==6:
            a.wait(vm=4+2*nb2[0]+(1 if post_pub else 0))
            a.valu('v_or_b32',vT,GB[0][0],GB[1][0]); a.valu('v_and_b32',vT,sMask,vT); a.valu('v_cmp_ne_u32','vcc',0,vT)
            a.branch('s_cbranch_vccnz',lb('agb'))
            a.raw(lb('agbok')+':',kind='plabel')
            stage_B(a,GB[0],GB[1])
        if ka<16:
            tile_op('v',ka)
            if ka==7:
                a.wait(lgkm=0); a.barrier()
                stream_load(a,STREAM[8],X[4])
            a.ds_read('ds_read_b128',Ar[ka%4],vMEMr,(ka+4)*512)
        if ka in (0,9,19): fs(a,{0:1,9:2,19:3}[ka])
    KFx={(T,k4):P(28+4*(2*k4+T-1),4) for k4 in range(4) for T in (1,2)}
    def kfx(T,k4): a.ds_read('ds_read_b128',KFx[(T,k4)],vFR,KXo+((T-1)*4+k4)*1024)
    pubq=P(60,4)
    a.valu('v_and_b32',vT,0x1f0,vL16); a.valu('v_and_b32',pubq[0],0x200,vL16); a.valu('v_lshl_add_u32',vT,pubq[0],2,vT)
    a.valu('v_add_u32',pubq[0],sPubL,vT)
    a.ds_read('ds_read_b128',pubq,pubq[0])
    tile_op('v',16)
    a.barrier()
    kfx(1,0); kfx(2,0)
    for m,off in (('q',0),('k',2048)):
        q_=acc[m]
        a.valu('v_cvt_pk_bf16_f32',q_[0],q_[0],q_[1]); a.valu('v_cvt_pk_bf16_f32',q_[1],q_[2],q_[3])
    a.bstore('buffer_store_dwordx4',pubq,vT,sWS,sKMVo,mods='sc1')
    a.ds_write('ds_write_b64',vQEw,acc['q'][0:2],0); a.ds_write('ds_write_b64',vQEw,acc['k'][0:2],2048)
    a.salu('s_add_u32',sKMVo,sKMVo,32*4096)
    kfx(1,1); kfx(2,1); kfx(1,2); kfx(2,2)
    fs(a,4)
    a.wait(lgkm=4); a.barrier()
    fs(a,5)
    QF=[P(0,4),P(4,4),P(60,4),P(64,4)]
    KF0=[Ar[k] for k in range(4)]
    Sacc=[KFx[(1,0)],P(68,4),P(72,4)]
    trfrag(QF[0],0,0); trfrag(QF[1],0,1); trfrag(KF0[0],2048,0)
    tile_op('v',17)
    trfrag(QF[2],0,2); trfrag(KF0[1],2048,1); kfx(1,3); kfx(2,3)
    tile_op('v',18)
    trfrag(QF[3],0,3); trfrag(KF0[2],2048,2)
    tile_op('v',19)
    trfrag(KF0[3],2048,3)
    fs(a,6)
    order=[(T,k4) for k4 in range(4) for T in (1,2)]
    VXF=[KFx[o] for o in order[1:]]+[P(76,4)]
    a.ds_read('ds_read_b128',VXF[7],vFR,VXo+7*1024)
    nvx=0
    v_=acc['v']
    for (T,k4) in order:
        a.mfma('v_mfma_f32_16x16x32_bf16',Sacc[T],KFx[(T,k4)],QF[k4],Sacc[T] if k4 else '0')
        if (T,k4)==(1,0):
            for k in range(4): a.valu('v_mov_b32',Sacc[0][k],vNEG)
        else:
            a.ds_read('ds_read_b128',VXF[nvx],vFR,VXo+nvx*1024)
            nvx+=1
        if (T,k4)==(1,1):
            a.valu('v_cvt_pk_bf16_f32',v_[0],v_[0],v_[1]); a.valu('v_cvt_pk_bf16_f32',v_[1],v_[2],v_[3])
            a.ds_write('ds_write_b64',vQEw,v_[0:2],4096)
    for k4 in range(4): a.mfma('v_mfma_f32_16x16x32_bf16',Sacc[0],KF0[k4],QF[k4],Sacc[0])
    fs(a,7)
    X3=[P(12,8),P(20,8),P(60,8)]
    OS=STREAM[9:]
    Px=P(8,4); Pm=P(80,2); mx=P(80); tm=P(81)
    s_=[Sacc[T][r] for T in range(3) for r in range(4)]
    a.valu('v_max3_f32',mx,s_[4],s_[5],s_[6]); a.valu('v_max3_f32',tm,s_[7],s_[8],s_[9])
    a.valu('v_max3_f32',mx,mx,s_[10],s_[11])
    a.wait(lgkm=0); a.barrier()
    a.salu('s_cmp_eq_u32',sStep,63,ndst=0); a.branch('s_cbranch_scc1',lb('last'))
    VE=[P(0,2),P(2,2),P(4,2),P(6,2),VXF[0][0:2],VXF[0][2:4],VXF[1][0:2],VXF[1][2:4]]
    for et in range(4): a.ds_read('ds_read_b64',VE[et],vVEr,et*256)
    a.valu('v_max3_f32',tm,tm,s_[0],s_[1])
    a.valu('v_max3_f32',mx,mx,s_[2],s_[3]); a.valu('v_max_f32',mx,mx,tm)
    a.valu('v_mov_b32',tm,mx); stream_load(a,OS[0],X3[0]); a.valu('v_permlane32_swap_b32',mx,tm); a.valu('v_max_f32',mx,mx,tm)
    a.valu('v_mov_b32',tm,mx); stream_load(a,OS[1],X3[1]); a.valu('v_permlane16_swap_b32',mx,tm); a.valu('v_max_f32',mx,mx,tm)
    a.valu('v_mul_f32',mx,sC[0],mx)
    for T in range(3):
        for h2 in range(2): a.valu('v_pk_fma_f32',Sacc[T][2*h2:2*h2+2],Sacc[T][2*h2:2*h2+2],sC,P(80,2),mods='op_sel_hi:[1,1,0] neg_lo:[0,0,1] neg_hi:[0,0,1]')
    for x in s_: a.valu('v_exp_f32',x,x)
    sm=Px[0:2]; rs=Px[2:4]
    a.valu('v_pk_add_f32',sm,Sacc[0][0:2],Sacc[0][2:4])
    for T in (1,2):
        a.valu('v_pk_add_f32',sm,sm,Sacc[T][0:2]); a.valu('v_pk_add_f32',sm,sm,Sacc[T][2:4])
    a.valu('v_add_f32',sm[0],sm[0],sm[1])
    a.valu('v_mov_b32',tm,sm[0]); stream_load(a,OS[2],X3[2]); a.valu('v_permlane32_swap_b32',sm[0],tm); a.valu('v_add_f32',sm[0],sm[0],tm)
    a.valu('v_mov_b32',tm,sm[0]); a.valu('v_permlane16_swap_b32',sm[0],tm); a.valu('v_add_f32',sm[0],sm[0],tm)
    a.valu('v_rcp_f32',rs[0],sm[0])
    for T in (1,2,0):
        for h2 in range(2): a.valu('v_pk_mul_f32',Sacc[T][2*h2:2*h2+2],Sacc[T][2*h2:2*h2+2],rs,mods='op_sel_hi:[1,0]')
    for T,o in ((1,0),(2,2)):
        for h2 in range(2): a.valu('v_cvt_pk_bf16_f32',Px[o+h2],Sacc[T][2*h2],Sacc[T][2*h2+1])
    for h2 in range(2): a.valu('v_cvt_pk_bf16_f32',Pm[h2],Sacc[0][2*h2],Sacc[0][2*h2+1])
    fs(a,8)
    O=[Sacc[1],Sacc[2],Sacc[0]]+[VXF[k] for k in range(2,7)]
    for et in range(8):
        a.mfma('v_mfma_f32_16x16x32_bf16',O[et],VXF[et],Px,'0')
        if et<2:
            a.ds_read('ds_read_b64',VE[4+2*et],vVEr,(4+2*et)*256); a.ds_read('ds_read_b64',VE[5+2*et],vVEr,(5+2*et)*256)
    fs(a,9)
    def cvt(et):
        d=O[et&~1]; o=2*(et&1)
        a.valu('v_cvt_pk_bf16_f32',d[o],O[et][0],O[et][1]); a.valu('v_cvt_pk_bf16_f32',d[o+1],O[et][2],O[et][3])
    A2=[O[0],O[2],O[4],O[6]]
    oacc=[Px,O[1],O[3],O[5],O[7]]
    LO=[P(0,8),R('v',VXF[0].i,8)]
    for et in range(8):
        a.mfma('v_mfma_f32_16x16x16_bf16',O[et],VE[et],Pm,O[et])
        if et==0: zero(a,Px)
        if et>=3: cvt(et-3)
        if et==4: lds_load(a,('o',1,0,0),LO[0])
    lds_load(a,('o',1,0,1),LO[1])
    fs(a,10)
    def fin(i):
        c=oacc[i]
        a.valu('v_cvt_pk_bf16_f32',c[0],c[0],c[1]); a.valu('v_cvt_pk_bf16_f32',c[1],c[2],c[3])
        a.valu('v_bfi_b32',c[0],sBM,vNEG,c[0])
        a.bstore('buffer_store_dwordx2',c[0:2],vPst,sWS,sPst[i],mods=st)
    for i in range(5):
        for k2 in range(2):
            for c2 in range(2):
                t=('o',i,k2,c2); loc=tile_loc[t]
                B=loc[1] if loc[0]=='reg' else (LO[c2] if loc[0]=='lds' else X3[OS.index(t)])
                a.smfmac(oacc[i],A2[2*k2+c2],B,vIdx)
                if loc[0]=='lds' and i+1<=3: lds_load(a,('o',i+1,0,c2),LO[c2])
                n_=2*k2+c2
                if i==0:
                    if n_==0: cvt(5)
                    if n_==1: cvt(6); cvt(7)
                    if n_==2: zero(a,O[1])
                    if n_==3: zero(a,O[3])
                if i==1 and n_==0: zero(a,O[5])
                if i==1 and n_==1: zero(a,O[7])
                if i>=1 and n_==2: fin(i-1)
    fin(4)
    fs(a,11)
    a.salu('s_add_u32',sStep,sStep,1)
    a.salu('s_add_u32',sKXo,sKXo,32*8192); a.salu('s_add_u32',sVXo,sVXo,32*8192)
    a.valu('v_xor_b32',vNEG,sBM,vNEG)
    a.salu('s_cmp_ge_u32',sUnit,80,ndst=0); a.branch('s_cbranch_scc1',lb('ag0'))
    Sel=P(40,4); m_=P(44); one=P(45)
    mk_mst(a)
    a.valu('v_lshrrev_b32',m_,4,vL16); a.valu('v_and_b32',m_,15,m_)
    a.valu('v_and_b32',one,1,m_); a.valu('v_lshlrev_b32',one,4,one)
    a.valu('v_mov_b32',P(46),'0x3f80'); a.valu('v_lshlrev_b32',one,one,P(46))
    a.valu('v_lshrrev_b32',m_,1,m_)
    for k in range(4):
        a.valu('v_cmp_eq_u32','vcc',k,m_); a.valu('v_cndmask_b32',Sel[k],0,one,'vcc')
    if D1: a.raw(f"s_sleep {D1}")
    G=[P(4*i,4) for i in range(4)]
    a.label(lb('rs'))
    guard(a)
    if 'cnt' in EXP: a.salu('s_add_u32',S(4),S(4),1)
    for i in range(4): a.bload('buffer_load_dwordx4',G[i],vL16,sWS,sRSoff,off=1024*i,mods='sc1')
    x=P(64); D=P(16,4)
    a.valu('v_or3_b32',x,G[0][0],G[0][2],G[1][0]); a.valu('v_or3_b32',x,x,G[1][2],G[2][0])
    a.valu('v_or3_b32',x,x,G[2][2],G[3][0]); a.valu('v_or_b32',x,x,G[3][2])
    a.valu('v_and_b32',x,sMaskP,x); a.valu('v_cmp_ne_u32','vcc',0,x)
    for i in range(4): a.mfma('v_mfma_f32_16x16x32_bf16',D,Sel,G[i],D if i else '0')
    a.branch('s_cbranch_vccnz',lb('rs'))
    for k in range(4): a.valu('v_add_f32',D[k],D[k],D[k],mods='row_ror:8 row_mask:0xf bank_mask:0xf')
    for k in range(4): a.valu('v_cvt_pk_bf16_f32',D[k],0,D[k])
    a.valu('v_or_b32',D[0],sMask,D[0])
    a.salu('s_mov_b64','exec','0x00ff00ff')
    a.bstore('buffer_store_dwordx4',D,vMst,sWS,sMSToff,mods=st)
    a.salu('s_mov_b64','exec',-1)
    fs(a,12)
    a.salu('s_mov_b32',sT0,sTag); a.salu('s_mov_b32',sTag,sMask); a.salu('s_mov_b32',sMask,sT0)
    a.salu('s_xor_b32',sMaskP,sMaskP,sBM)
    stage_addr(a)
    batch1(a)
    if D2: a.raw(f"s_sleep {D2}")
    a.branch('s_branch',lb('ag'))
    a.label(lb('ag0'))
    a.salu('s_mov_b32',sT0,sTag); a.salu('s_mov_b32',sTag,sMask); a.salu('s_mov_b32',sMask,sT0)
    a.salu('s_xor_b32',sMaskP,sMaskP,sBM)
    stage_addr(a)
    if prog: prog(a)
    if D1: a.raw(f"s_sleep {D1+6}")
    batch1(a)
    if D2: a.raw(f"s_sleep {D2}")
    a.label(lb('ag'))
    guard(a)
    if 'cnt' in EXP: a.salu('s_add_u32',S(5),S(5),1)
    G=P(0,12)
    for i in range(3): a.bload('buffer_load_dwordx4',G[4*i:4*i+4],vL16,sWS,sAG[i],mods='sc1')
    x=P(40)
    a.valu('v_or3_b32',x,G[0],G[4],G[8])
    a.valu('v_and_b32',x,sMask,x); a.valu('v_cmp_ne_u32','vcc',0,x)
    a.branch('s_cbranch_vccnz',lb('ag'))
    fs(a,13)
    for i in range(2): a.bload('buffer_load_dwordx4',GB[i],vL16,sWS,sAG[3+i],mods='sc1')
    stage_A(a,G)
    dma2(a)
    if post_pub: post_pub(a)
    a.branch('s_branch',lb('top'))
    a.label(lb('agb'))
    guard(a)
    for i in range(2): a.bload('buffer_load_dwordx4',GB[i],vL16,sWS,sAG[3+i],mods='sc1')
    a.wait(vm=0)
    a.valu('v_or_b32',vT,GB[0][0],GB[1][0]); a.valu('v_and_b32',vT,sMask,vT); a.valu('v_cmp_ne_u32','vcc',0,vT)
    a.branch('s_cbranch_vccnz',lb('agb'))
    a.nop(4)
    a.branch('s_branch',lb('agbok'))
    a.label(lb('last'))
    publish(a,P(76,4))
    a.label(lb('exit'))

def chain_first(a,pre_dma=None):
    G=P(0,12); GB=[P(76,4),P(80,4)]; u=P(64); rh=P(65); off=P(66)
    a.valu('v_lshrrev_b32',u,1,vT); a.valu('v_and_b32',rh,1,vT)
    a.salu('s_movk_i32',sT0,4*1280); a.valu('v_mul_lo_u32',off,rh,sT0); a.valu('v_lshl_add_u32',off,u,1,off)
    regs=[G[k] for k in range(12)]+[GB[0][k] for k in range(4)]+[GB[1][k] for k in range(4)]
    for r_ in regs: a.valu('v_mov_b32',r_,0)
    for r in range(4):
        a.salu('s_movk_i32',sT1,r*1280)
        for i in range(5):
            a.bload('buffer_load_short_d16_hi',regs[4*i+r],off,sM0,sT1,off=i*256).rd |= set(regs[4*i+r].regs())
    batch1(a)
    a.wait(vm=0)
    stage_addr(a)
    stage_A(a,G)
    dma2(a)
    if pre_dma: pre_dma(a)
```

```python
from chain import *
def FLG(i): return FL+128*i
O_CHT=FLG(0); O_CHBAR=FLG(1); O_TASK=FLG(2); O_PROG=FLG(3)
O_Q=FLG(96)
O_RB=FLG(8)
O_AT=FLG(32)
NFLG=128
F_LN=0; F_KV=5; F_Q=11; F_H=17
sTask=S(60); sWv_=S(61); sA=S(62); sB=S(63); sCn=S(64); sD=S(65); sE=S(66); sF=S(67)
sWo_=S(68); sAo=S(69); sK=S(70); sOut=S(71); sRB=S(72); sG=S(73); sLB=S(74); sRow=S(75); sI=S(76); sJ=S(77)
sWo2=S(78); sAst=S(79)
pL16=V(1); pW0=V(2); pW1=V(3); pTR=[V(4+i) for i in range(8)]; pT=[V(12+i) for i in range(12)]
pLane=V(24); pG=V(25); pN=V(26)
WFb=28
AFb=92
def WF(b,ct): return V(WFb+32*b+4*ct,4)
def AF(b,tt): return V(AFb+32*b+4*tt,4)
def ACC(ct,tt,NT): return A(4*(ct*NT+tt),4)

def par_setup(a):
    a.valu('v_and_b32',pLane,63,vT)
    a.valu('v_lshrrev_b32',pT[0],6,vT); a.valu('v_readfirstlane_b32',sWv_,pT[0])
    a.valu('v_lshlrev_b32',pL16,4,pLane)
    a.valu('v_lshrrev_b32',pG,4,pLane); a.valu('v_and_b32',pN,15,pLane)
    a.salu('s_lshl_b32',sLB,sWv_,15)
    a.valu('v_lshrrev_b32',pT[0],2,pLane); a.valu('v_and_b32',pT[1],7,pT[0]); a.valu('v_and_b32',pT[2],3,pLane)
    a.valu('v_lshlrev_b32',pT[0],8,pT[0]); a.valu('v_lshl_add_u32',pT[0],pT[1],5,pT[0]); a.valu('v_lshl_add_u32',pT[0],pT[2],3,pT[0])
    for ct in range(8):
        a.valu('v_xor_b32',pT[1],32*ct,pT[0]); a.valu('v_add_u32',pTR[ct],sLB,pT[1])

def set_wstride(a,rs):
    a.salu('s_mov_b32',sA,rs)
    a.valu('v_mul_lo_u32',pT[0],pG,sA)
    for j,dst in ((0,pW0),(1,pW1)):
        a.valu('v_lshlrev_b32',pT[1],1,pG);
        if j: a.valu('v_add_u32',pT[1],8,pT[1])
        a.valu('v_xor_b32',pT[1],pT[1],pN); a.valu('v_lshl_add_u32',dst,pT[1],4,pT[0])

def gemm_core(a,name,NT,srdW,rs,nk,formT=True,act_stride=None,zero_acc=True,NCT=8):
    if zero_acc:
        for r in range(0,4*NCT*NT): a.valu('v_accvgpr_write_b32',A(r),0)
    def dma(slot):
        for j in range(NCT):
            a.salu('s_add_u32','m0',sLB,slot*8192+j*1024)
            a.salu('s_add_u32',sA,sWo_,(32//NCT)*j*rs)
            a.bload_lds('buffer_load_dwordx4',pW1 if (j&1 and NCT==8) else pW0,srdW,sA)
        a.salu('s_add_u32',sWo_,sWo_,32*rs)
    def act(b):
        a.salu('s_mov_b32',sB,sAo)
        for tt in range(NT):
            a.bload('buffer_load_dwordx4',AF(b,tt),pL16,sWS,sB,mods='sc1')
            if tt+1<NT: a.salu('s_add_u32',sB,sB,sAst)
        a.salu('s_add_u32',sAo,sAo,1024)
    def trs(b,slot):
        for ct in range(NCT):
            for hh in range(2): a.ds_read('ds_read_b64_tr_b16',WF(b,ct)[2*hh:2*hh+2],pTR[ct],slot*8192+hh*512*NCT)
    dma(0); act(0); dma(1); act(1); dma(2)
    a.wait(vm=2*NT+2*NCT); trs(0,0)
    a.salu('s_mov_b32',sK,0)
    a.label(f'L_{name}_loop')
    for u in range(4):
        a.wait(vm=8+ (NT if False else 0) + 0 if False else 8+NT-NT+0, lgkm=0) if False else None
        a.wait(vm=NT+NCT,lgkm=0)
        def mm():
            for ct in range(NCT):
                for tt in range(NT):
                    if formT: a.mfma('v_mfma_f32_16x16x32_bf16',ACC(ct,tt,NT),WF(u%2,ct),AF(u,tt),ACC(ct,tt,NT))
                    else: a.mfma('v_mfma_f32_16x16x32_bf16',ACC(ct,tt,NT),AF(u,tt),WF(u%2,ct),ACC(ct,tt,NT))
        def side():
            trs((u+1)%2,(u+1)%4); act((u+2)%4); dma((u+3)%4)
        m_=a.capture(mm); s_=a.capture(side)
        a.put(weave(m_,s_,per=max(1,-(-len(s_)//max(1,len(m_)-2)))))
    a.salu('s_add_u32',sK,sK,4); a.salu('s_cmp_lt_u32',sK,nk,ndst=0); a.branch('s_cbranch_scc1',f'L_{name}_loop')
    a.wait(vm=0,lgkm=0)
    a.nop(7); a.nop(7)

def rd_acc(a,dst,q):
    for r in range(4): a.valu('v_accvgpr_read_b32',dst[r],q[r])

uid=[0]
def signal(a,dw,val):
    uid[0]+=1; l=f'L_sig{uid[0]}'
    a.wait(vm=0); a.barrier()
    a.salu('s_cmp_lg_u32',sWv_,0,ndst=0); a.branch('s_cbranch_scc1',l)
    a.valu('v_mov_b32',pT[0],val); a.valu('v_mov_b32',pT[1],0)
    a.salu('s_mov_b64','exec',1)
    a.batomic('buffer_atomic_add',pT[0],pT[1],sWS,dw,mods='sc1')
    a.salu('s_mov_b64','exec',-1)
    a.label(l)
def wait_field(a,dw,shift_s,mask,need,slp=16):
    uid[0]+=1; l=f'L_wf{uid[0]}'; l2=l+'d'
    a.salu('s_cmp_lg_u32',sWv_,0,ndst=0); a.branch('s_cbranch_scc1',l2)
    a.valu('v_mov_b32',pT[1],0)
    a.label(l)
    guard(a)
    a.bload('buffer_load_dword',pT[0],pT[1],sWS,dw,mods='sc1')
    a.valu('v_lshrrev_b32',pT[0],shift_s,pT[0]); a.valu('v_and_b32',pT[0],mask,pT[0])
    a.valu('v_cmp_le_u32','vcc',need,pT[0])
    a.branch('s_cbranch_vccnz',l2)
    a.raw(f's_sleep {slp}')
    a.branch('s_branch',l)
    a.label(l2)
    a.barrier()

def bf16r(a,dst_pk,x0,x1): a.valu('v_cvt_pk_bf16_f32',dst_pk,x0,x1)
def unpk(a,lo,hi,pk):
    a.valu('v_lshlrev_b32',lo,16,pk); a.valu('v_and_b32',hi,'0xffff0000',pk)

def task_ln(a):
    X_=[[V(28+16*rr+k) for k in range(12)] for rr in range(2)]; RAW=[V(60,6),V(66,6)]
    s1=V(72); t=V(73); mean=V(74); o=V(76,2); vo=V(78); so=[V(79),V(80),V(81)]; mb=V(82); rstd=V(83)
    a.valu('v_lshlrev_b32',vo,3,pLane)
    a.valu('v_cmp_gt_u32',S(90,2),32,pLane)
    a.salu('s_lshl_b32',sA,sI,3); a.salu('s_lshl_b32',sB,sWv_,1); a.salu('s_add_u32',sRow,sA,sB)
    a.salu('s_mul_i32',sA,sRow,1280)
    for rr in range(2):
        raw=RAW[rr]
        a.valu('v_mov_b64',raw[4:6],0)
        a.bload('buffer_load_dwordx2',raw[0:2],vo,sX,sA,off=1280*rr); a.bload('buffer_load_dwordx2',raw[2:4],vo,sX,sA,off=1280*rr+512)
    a.salu('s_mov_b64','exec',S(90,2))
    for rr in range(2): a.bload('buffer_load_dwordx2',RAW[rr][4:6],vo,sX,sA,off=1280*rr+1024).rd|=set(RAW[rr][4:6].regs())
    a.salu('s_mov_b64','exec',-1)
    for i in range(3):
        a.valu('v_add_u32',t,64*i,pLane)
        a.valu('v_lshrrev_b32',so[i],3,t); a.valu('v_lshlrev_b32',so[i],10,so[i])
        a.valu('v_and_b32',s1,3,t); a.valu('v_lshl_add_u32',so[i],s1,8,so[i])
        a.valu('v_bfe_u32',s1,t,2,1); a.valu('v_lshl_add_u32',so[i],s1,3,so[i])
    a.salu('s_lshr_b32',sA,sRow,4); a.salu('s_mul_i32',sA,sA,20480); a.salu('s_and_b32',sB,sRow,15); a.salu('s_lshl_b32',sB,sB,4); a.salu('s_add_u32',sA,sA,sB); a.salu('s_add_u32',sOut,sA,XN)
    def wsum(dst):
        for sh in (8,4,2,1): a.valu('v_add_f32',dst,dst,dst,mods=f'row_ror:{sh} row_mask:0xf bank_mask:0xf')
        xlane(a,'v_add_f32',dst,t)
    for rr in range(2):
        x=X_[rr]; raw=RAW[rr]
        for k in range(6): unpk(a,x[2*k],x[2*k+1],raw[k])
        a.valu('v_add_f32',s1,x[0],x[1])
        for k in range(2,12): a.valu('v_add_f32',s1,s1,x[k])
        wsum(s1)
        a.valu('v_mul_f32',mean,'0x3acccccd',s1)
        a.valu('v_sub_f32',t,x[0],mean); a.valu('v_mul_f32',s1,t,t)
        for k in range(1,8): a.valu('v_sub_f32',t,x[k],mean); a.valu('v_fmac_f32',s1,t,t,rmw=True)
        a.valu('v_mov_b32',rstd,0)
        for k in range(8,12): a.valu('v_sub_f32',t,x[k],mean); a.valu('v_fmac_f32',rstd,t,t,rmw=True)
        a.valu('v_cndmask_b32',rstd,0,rstd,S(90,2)); a.valu('v_add_f32',s1,s1,rstd)
        wsum(s1)
        a.valu('v_mul_f32',s1,'0x3acccccd',s1)
        bf16r(a,t,mean,s1); unpk(a,mb,s1,t)
        a.valu('v_add_f32',s1,'0x3727c5ac',s1); bf16r(a,t,s1,s1); a.valu('v_lshlrev_b32',s1,16,t)
        a.valu('v_sqrt_f32',s1,s1); bf16r(a,t,s1,s1); a.valu('v_lshlrev_b32',s1,16,t)
        a.valu('v_rcp_f32',rstd,s1)
        for i in range(3):
            for k in range(4): a.valu('v_sub_f32',x[4*i+k],x[4*i+k],mb)
            for k in range(0,4,2):
                bf16r(a,t,x[4*i+k],x[4*i+k+1]); unpk(a,x[4*i+k],x[4*i+k+1],t)
            for k in range(4):
                xx=x[4*i+k]
                a.valu('v_mul_f32',mean,xx,rstd); a.valu('v_fma_f32',xx,'-'+str(mean),s1,xx); a.valu('v_fma_f32',xx,xx,rstd,mean)
            bf16r(a,o[0],x[4*i],x[4*i+1]); bf16r(a,o[1],x[4*i+2],x[4*i+3])
            if i==2: a.salu('s_mov_b64','exec',S(90,2))
            a.bstore('buffer_store_dwordx2',o,so[i],sWS,sOut,off=16*rr,mods='sc1')
            if i==2: a.salu('s_mov_b64','exec',-1)

def rb_off(a,dst): a.salu('s_lshl_b32',dst,sRB,7); a.salu('s_add_u32',dst,dst,O_RB)

def epi_T(a,NT,store):
    q=[V(28,4),V(32,4)]; o=[V(36,4),V(40,4)]; n=0
    for tt in range(NT):
        for k4 in range(4):
            oo=o[n%2]; n+=1
            for h in range(2):
                rd_acc(a,q[h],ACC(2*k4+h,tt,NT))
                bf16r(a,oo[2*h],q[h][0],q[h][1]); bf16r(a,oo[2*h+1],q[h][2],q[h][3])
            store(tt,k4,oo)

def task_kq(a,name,srd,dest,field):
    set_wstride(a,8192)
    a.salu('s_lshl_b32',sWo_,sJ,8)
    a.salu('s_mul_i32',sAo,sRB,8*20480); a.salu('s_add_u32',sAo,sAo,XN); a.salu('s_mov_b32',sAst,20480); a.salu('s_mov_b32',sCn,20)
    gemm_core(a,name,8,srd,8192,sCn,True)
    a.salu('s_lshl_b32',sOut,sRB,7); a.salu('s_add_u32',sOut,sOut,sJ); a.salu('s_lshl_b32',sOut,sOut,13); a.salu('s_add_u32',sOut,sOut,dest)
    def st(tt,k4,oo):
        a.salu('s_add_u32',sA,sOut,(tt//2)*32*8192+(tt%2)*4096)
        a.bstore('buffer_store_dwordx4',oo,pL16,sWS,sA,off=k4*1024,mods='sc1')
    epi_T(a,8,st)
    rb_off(a,sD); signal(a,sD,1<<field)
def task_v(a):
    set_wstride(a,8192)
    a.salu('s_lshl_b32',sWo_,sJ,8)
    a.salu('s_mul_i32',sAo,sRB,8*20480); a.salu('s_add_u32',sAo,sAo,XN); a.salu('s_mov_b32',sAst,20480); a.salu('s_mov_b32',sCn,20)
    gemm_core(a,'gv',8,sWv,8192,sCn,False)
    a.salu('s_lshl_b32',sOut,sRB,7); a.salu('s_add_u32',sOut,sOut,sJ); a.salu('s_lshl_b32',sOut,sOut,13); a.salu('s_add_u32',sOut,sOut,VX)
    q=[V(28,4),V(32,4)]; o=[V(36,4),V(40,4)]; n=0
    for sg in range(4):
        for et in range(8):
            oo=o[n%2]; n+=1
            for h in range(2):
                rd_acc(a,q[h],ACC(et,2*sg+h,8))
                bf16r(a,oo[2*h],q[h][0],q[h][1]); bf16r(a,oo[2*h+1],q[h][2],q[h][3])
            a.salu('s_add_u32',sA,sOut,sg*32*8192+(et//4)*4096)
            a.bstore('buffer_store_dwordx4',oo,pL16,sWS,sA,off=(et%4)*1024,mods='sc1')
    rb_off(a,sD); signal(a,sD,1<<F_KV)

HKS=56
def task_f1(a):
    uid[0]+=1; l=f'L_f1skip{uid[0]}'
    set_wstride(a,3456)
    a.salu('s_cmp_ge_u32',sJ,14,ndst=0); a.branch('s_cbranch_scc1',l)
    a.salu('s_lshl_b32',sWo_,sJ,8)
    a.salu('s_mul_i32',sAo,sRB,8*20480); a.salu('s_add_u32',sAo,sAo,XN); a.salu('s_mov_b32',sAst,20480); a.salu('s_mov_b32',sCn,20)
    gemm_core(a,'gf',8,sW1,3456,sCn,True)
    bias=V(44,32); bb=V(76,16); ok=V(92)
    a.valu('v_lshlrev_b32',pT[2],3,pG); a.salu('s_lshl_b32',sA,sJ,8)
    for ct in range(8): a.bload('buffer_load_dwordx2',bb[2*ct:2*ct+2],pT[2],sB1,sA,off=32*ct)
    for ct in range(8):
        unpk(a,bias[4*ct],bias[4*ct+1],bb[2*ct]); unpk(a,bias[4*ct+2],bias[4*ct+3],bb[2*ct+1])
    a.salu('s_mul_i32',sOut,sRB,8*HKS*1024); a.salu('s_lshl_b32',sA,sJ,12); a.salu('s_add_u32',sOut,sOut,sA); a.salu('s_add_u32',sOut,sOut,HF)
    a.salu('s_cmp_eq_u32',sJ,13,ndst=0); a.salu('s_cselect_b32',sE,0,-1)
    q=[V(28,4),V(32,4)]; o=[V(36,4),V(40,4)]; n=0; t=V(93)
    for tt in range(8):
        for k4 in range(4):
            oo=o[n%2]; n+=1
            for h in range(2):
                qq=q[h]; rd_acc(a,qq,ACC(2*k4+h,tt,8))
                for p in range(2):
                    bf16r(a,t,qq[2*p],qq[2*p+1]); unpk(a,qq[2*p],qq[2*p+1],t)
                    a.valu('v_add_f32',qq[2*p],qq[2*p],bias[4*(2*k4+h)+2*p]); a.valu('v_add_f32',qq[2*p+1],qq[2*p+1],bias[4*(2*k4+h)+2*p+1])
                    bf16r(a,t,qq[2*p],qq[2*p+1]); unpk(a,qq[2*p],qq[2*p+1],t)
                    a.valu('v_max_f32',qq[2*p],0,qq[2*p]); a.valu('v_max_f32',qq[2*p+1],0,qq[2*p+1])
                    a.valu('v_mul_f32',qq[2*p],qq[2*p],qq[2*p]); a.valu('v_mul_f32',qq[2*p+1],qq[2*p+1],qq[2*p+1])
                    bf16r(a,oo[2*h+p],qq[2*p],qq[2*p+1])
                    if k4>=2: a.valu('v_and_b32',oo[2*h+p],sE,oo[2*h+p])
            a.salu('s_add_u32',sA,sOut,tt*HKS*1024)
            a.bstore('buffer_store_dwordx4',oo,pL16,sWS,sA,off=k4*1024,mods='sc1')
    a.label(l)
    rb_off(a,sD); signal(a,sD,1<<F_H)

def task_at(a):
    uid[0]+=1; l=f'L_atw{uid[0]}'
    a.salu('s_lshr_b32',sRB,sI,2); rb_off(a,sD)
    wait_field(a,sD,F_Q,63,8); wait_field(a,sD,F_KV,63,16)
    QF=[[V(28+4*(4*u+k),4) for k in range(4)] for u in range(2)]
    KF=[[V(60+4*(4*T+k),4) for k in range(4)] for T in range(2)]
    VF=[V(92+4*e,4) for e in range(8)]
    K0=[V(124+4*k,4) for k in range(4)]
    V0=[V(140+2*e,2) for e in range(8)]
    a.salu('s_lshl_b32',sA,sI,5); a.salu('s_add_u32',sA,sA,sJ); a.salu('s_lshl_b32',sB,sA,13)
    for base,regs in ((QX,QF[0]+QF[1]),(KX,KF[0]+KF[1]),(VX,VF)):
        a.salu('s_add_u32',sE,sB,base); a.salu('s_add_u32',sF,sB,base+4096)
        for k,r in enumerate(regs): a.bload('buffer_load_dwordx4',r,pL16,sWS,sE if k<4 else sF,off=(k%4)*1024,mods='sc1')
    a.valu('v_mov_b32',pT[2],0); a.salu('s_add_u32',sE,sI,1); a.salu('s_mov_b32',sF,O_PROG)
    a.salu('s_cmp_lg_u32',sWv_,0,ndst=0); a.branch('s_cbranch_scc1',l+'d')
    a.label(l)
    guard(a)
    a.bload('buffer_load_dwordx2',V(12,2),pT[2],sWS,sF,mods='sc1')
    a.valu('v_cmp_le_i32',S(90,2),sE,pT[0]); a.valu('v_cmp_le_u32','vcc',32,pT[1])
    a.salu('s_or_b64','vcc','vcc',S(90,2))
    a.branch('s_cbranch_vccnz',l+'d')
    a.raw('s_sleep 32')
    a.branch('s_branch',l)
    a.label(l+'d')
    a.barrier()
    a.salu('s_lshl_b32',sB,sA,12); a.salu('s_add_u32',sB,sB,KMV)
    for j in range(2):
        a.salu('s_add_u32','m0',sLB,0)
        a.bload_lds('buffer_load_dwordx4',pL16,sWS,sB,off=1024*j,mods='sc1')
    g2=pT[3]; va=pT[4]; ta=pT[5]
    a.valu('v_and_b32',g2,1,pG); a.valu('v_lshlrev_b32',va,4,pN); a.valu('v_lshl_add_u32',va,g2,3,va)
    for e in range(8): a.bload('buffer_load_dwordx2',V0[e],va,sWS,sB,off=2048+256*e,mods='sc1')
    a.valu('v_lshrrev_b32',ta,2,pLane); a.valu('v_lshlrev_b32',ta,4,ta); a.valu('v_and_b32',pT[6],1,pLane); a.valu('v_lshl_add_u32',ta,pT[6],3,ta)
    a.valu('v_add_u32',ta,sLB,ta)
    a.wait(vm=0)
    for k in range(4):
        for hh in range(2): a.ds_read('ds_read_b64_tr_b16',K0[k][2*hh:2*hh+2],ta,512*k+256*hh)
    cm=[S(80+2*r,2) for r in range(4)]; m0_=S(88,2)
    for r in range(4):
        a.valu('v_lshl_add_u32',pT[6],pG,2,r); a.valu('v_cmp_gt_u32',cm[r],pT[6],pN)
    a.valu('v_cmp_le_u32',m0_,2,pG)
    NEG=pT[7]; a.valu('v_mov_b32',NEG,'0xce6e6b28')
    Sq={}; base=156
    for u in range(2):
        for T in range(3):
            if (T,u)==(2,0): continue
            Sq[(T,u)]=V(base,4); base+=4
            for k in range(4):
                src=K0[k] if T==0 else KF[T-1][k]
                a.mfma('v_mfma_f32_16x16x32_bf16',Sq[(T,u)],src,QF[u][k],Sq[(T,u)] if k else '0')
    t=pT[8]; mx=pT[9]; sm=pT[10]; tm=pT[11]
    Pq={}
    a.salu('s_mov_b32',sE,'0x3db504f3'); a.salu('s_mov_b32',sF,'0x3fb8aa3b')
    for u in range(2):
        Ts=[T for T in range(3) if (T,u) in Sq]
        vals=[]
        for T in Ts:
            q=Sq[(T,u)]
            for p in range(2):
                bf16r(a,t,q[2*p],q[2*p+1]); unpk(a,q[2*p],q[2*p+1],t)
                a.valu('v_mul_f32',q[2*p],sE,q[2*p]); a.valu('v_mul_f32',q[2*p+1],sE,q[2*p+1])
                bf16r(a,t,q[2*p],q[2*p+1]); unpk(a,q[2*p],q[2*p+1],t)
            for r in range(4):
                if T==0: a.valu('v_cndmask_b32',q[r],q[r],NEG,m0_)
                elif T==u+1: a.valu('v_cndmask_b32',q[r],q[r],NEG,cm[r])
                vals.append(q[r])
        a.valu('v_max_f32',mx,vals[0],vals[1])
        for k in range(2,len(vals),2): a.valu('v_max3_f32',mx,mx,vals[k],vals[k+1])
        xlane(a,'v_max_f32',mx,tm)
        for x in vals:
            a.valu('v_sub_f32',x,x,mx); a.valu('v_mul_f32',x,sF,x); a.valu('v_exp_f32',x,x)
        for r in range(4): a.valu('v_cndmask_b32',Sq[(0,u)][r],Sq[(0,u)][r],0,m0_)
        a.valu('v_add_f32',sm,vals[0],vals[1])
        for x in vals[2:]: a.valu('v_add_f32',sm,sm,x)
        xlane(a,'v_add_f32',sm,tm)
        a.valu('v_rcp_f32',sm,sm)
        for x in vals: a.valu('v_mul_f32',x,x,sm)
        px=V(176+6*u,4); pm=V(180+6*u,2); Pq[u]=(px,pm)
        for T,o in ((1,0),(2,2)):
            for h2 in range(2):
                if (T,u) in Sq: bf16r(a,px[o+h2],Sq[(T,u)][2*h2],Sq[(T,u)][2*h2+1])
                else: a.valu('v_mov_b32',px[o+h2],0)
        for h2 in range(2): bf16r(a,pm[h2],Sq[(0,u)][2*h2],Sq[(0,u)][2*h2+1])
    a.salu('s_lshl_b32',sA,sI,1); a.salu('s_lshl_b32',sA,sA,5); a.salu('s_add_u32',sA,sA,sJ); a.salu('s_lshl_b32',sA,sA,12); a.salu('s_add_u32',sOut,sA,OX)
    for u in range(2):
        px,pm=Pq[u]
        O=[V(28+4*e,4) for e in range(8)] if u==0 else [V(188+4*e,4) for e in range(8)]
        if u==0: O=[V(60+4*e,4) for e in range(8)]
        for e in range(8): a.mfma('v_mfma_f32_16x16x32_bf16',O[e],VF[e],px,'0')
        for e in range(8): a.mfma('v_mfma_f32_16x16x16_bf16',O[e],V0[e],pm,O[e])
        for k4 in range(4):
            oo=V(28+4*(4*u+k4),4)
            for h in range(2):
                bf16r(a,oo[2*h],O[2*k4+h][0],O[2*k4+h][1]); bf16r(a,oo[2*h+1],O[2*k4+h][2],O[2*k4+h][3])
            a.salu('s_add_u32',sA,sOut,u*32*4096)
            a.bstore('buffer_store_dwordx4',oo,pL16,sWS,sA,off=k4*1024,mods='sc1')
    a.salu('s_lshl_b32',sA,sI,7); a.salu('s_add_u32',sD,sA,O_AT)
    signal(a,sD,1)

def task_fin(a):
    a.salu('s_movk_i32',sA,1280)
    a.valu('v_lshrrev_b32',pT[0],3,pLane); a.valu('v_mul_lo_u32',pT[0],pT[0],sA)
    a.valu('v_and_b32',pT[1],7,pLane); a.valu('v_lshlrev_b32',pT[2],1,pG); a.valu('v_xor_b32',pT[1],pT[1],pT[2]); a.valu('v_lshl_add_u32',pW0,pT[1],4,pT[0])
    rho=pT[2]; c=pT[3]; r7=pT[4]; b=pT[5]
    a.valu('v_lshrrev_b32',rho,2,pLane); a.valu('v_and_b32',c,3,pLane); a.valu('v_bfe_u32',r7,pLane,3,2)
    a.valu('v_lshlrev_b32',b,7,rho); a.valu('v_and_b32',pT[6],1,c); a.valu('v_lshl_add_u32',b,pT[6],4,b); a.valu('v_add_u32',b,sLB,b)
    a.valu('v_lshrrev_b32',c,1,c)
    for ct in range(4):
        a.valu('v_add_u32',pT[6],2*(ct//2),c); a.valu('v_xor_b32',pT[6],pT[6],r7); a.valu('v_lshl_add_u32',pT[6],pT[6],5,b)
        a.valu('v_add_u32',pTR[ct],8*(ct%2),pT[6])
    a.salu('s_lshr_b32',sRB,sI,2); rb_off(a,sD); wait_field(a,sD,F_H,15,4)
    a.salu('s_lshl_b32',sE,sWv_,4); a.salu('s_cmp_eq_u32',sWv_,3,ndst=0); a.salu('s_cselect_b32',sE,44,sE)
    a.salu('s_cmp_ge_u32',sWv_,2,ndst=0); a.salu('s_cselect_b32',sCn,12,16)
    a.salu('s_mul_i32',sWo_,sE,32*1280); a.salu('s_lshl_b32',sA,sJ,7); a.salu('s_add_u32',sWo_,sWo_,sA)
    a.salu('s_mul_i32',sAo,sI,2*HKS*1024); a.salu('s_lshl_b32',sA,sE,10); a.salu('s_add_u32',sAo,sAo,sA); a.salu('s_add_u32',sAo,sAo,HF)
    a.salu('s_mov_b32',sAst,HKS*1024)
    gemm_core(a,'g2',2,sW2,1280,sCn,True,NCT=4)
    for r in range(32):
        a.valu('v_accvgpr_read_b32',pT[2],A(r)); a.valu('v_accvgpr_write_b32',A(32+r),pT[2])
    a.salu('s_lshl_b32',sA,sI,7); a.salu('s_add_u32',sD,sA,O_AT)
    wait_field(a,sD,0,15,8,slp=4)
    a.salu('s_mul_i32',sWo_,sWv_,1024*1280); a.salu('s_lshl_b32',sA,sJ,7); a.salu('s_add_u32',sWo_,sWo_,sA)
    a.salu('s_lshl_b32',sAo,sI,18); a.salu('s_lshl_b32',sA,sWv_,15); a.salu('s_add_u32',sAo,sAo,sA); a.salu('s_add_u32',sAo,sAo,OX)
    a.salu('s_mov_b32',sAst,131072); a.salu('s_mov_b32',sCn,32)
    gemm_core(a,'go',2,sWo,1280,sCn,True,NCT=4)
    a.valu('v_add_u32',pT[2],sLB,pL16)
    for qi in range(16): a.ds_write('ds_write_b128',pT[2],A(4*qi,4),qi*1024)
    a.salu('s_lshr_b32',sG,sWv_,1); a.salu('s_and_b32',sRow,sWv_,1)
    a.salu('s_lshl_b32',sA,sG,12); a.salu('s_lshl_b32',sB,sRow,10); a.salu('s_add_u32',sA,sA,sB)
    a.valu('v_add_u32',pT[2],sA,pL16); a.valu('v_add_u32',pT[5],65536,pT[2])
    xo=pT[3]; a.salu('s_movk_i32',sA,1280); a.valu('v_mul_lo_u32',xo,pN,sA); a.valu('v_lshl_add_u32',xo,pG,4,xo)
    a.salu('s_lshl_b32',sB,sI,5); a.salu('s_lshl_b32',sA,sRow,4); a.salu('s_add_u32',sB,sB,sA); a.salu('s_mul_i32',sE,sB,1280)
    a.salu('s_lshl_b32',sA,sJ,7); a.salu('s_lshl_b32',sB,sG,6); a.salu('s_add_u32',sA,sA,sB); a.salu('s_add_u32',sE,sE,sA)
    xr=V(28,4); b2=V(36,4); bo=pT[4]
    a.bload('buffer_load_dwordx4',xr,xo,sX,sE)
    a.valu('v_lshlrev_b32',bo,4,pG); a.bload('buffer_load_dwordx4',b2,bo,sB2,sA)
    a.wait(lgkm=0); a.barrier()
    bias=V(40,8)
    S_=[V(48,4),V(52,4)]; F_=[V(56,4),V(60,4)]
    n=0
    for st_,dst in ((0,S_),(1,F_)):
        for h in range(2):
            tmp=[V(64+16*n+4*k,4) for k in range(4)]; n+=1
            for wv in range(4):
                off=wv*32768+(st_*8+h*2)*1024
                if off<65536: a.ds_read('ds_read_b128',tmp[wv],pT[2],off)
                else: a.ds_read('ds_read_b128',tmp[wv],pT[5],off-65536)
    for k in range(4): unpk(a,bias[2*k],bias[2*k+1],b2[k])
    n=0
    for st_,dst in ((0,S_),(1,F_)):
        for h in range(2):
            tmp=[V(64+16*n+4*k,4) for k in range(4)]; n+=1
            for r in range(4):
                a.valu('v_add_f32',dst[h][r],tmp[0][r],tmp[1][r]); a.valu('v_add_f32',tmp[2][r],tmp[2][r],tmp[3][r]); a.valu('v_add_f32',dst[h][r],dst[h][r],tmp[2][r])
    o=V(128,4); t=V(132); e0=V(133); e1=V(134); x0=V(135); x1=V(136)
    a.salu('s_mov_b32',sA,'0xbfb8aa3b')
    for k in range(4):
        s0,s1=S_[k//2][2*(k%2)],S_[k//2][2*(k%2)+1]; f0,f1=F_[k//2][2*(k%2)],F_[k//2][2*(k%2)+1]
        bf16r(a,t,s0,s1); unpk(a,s0,s1,t)
        bf16r(a,t,f0,f1); unpk(a,f0,f1,t)
        a.valu('v_add_f32',f0,f0,bias[2*k]); a.valu('v_add_f32',f1,f1,bias[2*k+1])
        bf16r(a,t,f0,f1); unpk(a,f0,f1,t)
        for f,e in ((f0,e0),(f1,e1)):
            a.valu('v_mul_f32',e,sA,f); a.valu('v_exp_f32',e,e); a.valu('v_add_f32',e,1.0,e); a.valu('v_rcp_f32',e,e); a.valu('v_mul_f32',f,f,e)
        bf16r(a,t,f0,f1); unpk(a,f0,f1,t)
        a.valu('v_mul_f32',s0,s0,f0); a.valu('v_mul_f32',s1,s1,f1)
        bf16r(a,t,s0,s1); unpk(a,s0,s1,t)
        unpk(a,x0,x1,xr[k])
        a.valu('v_add_f32',s0,s0,x0); a.valu('v_add_f32',s1,s1,x1)
        bf16r(a,o[k],s0,s1)
    a.bstore('buffer_store_dwordx4',o,xo,sOUT,sE)
    a.wait(lgkm=0); a.barrier()
    par_setup(a)
```

```python
import sys
from par import *
KN='recurrent_scan__memory_aug_recurrent_mem_tr__dense_activation_squared_relu__prompt_kernel'
D1,D2=1,0
a=Asm()
PROF=os.environ.get('PROF','')=='1'
def prof(dw,op='buffer_atomic_umax',vr=(V(20),V(21))):
    if not PROF: return
    a.raw("s_memrealtime s[98:99]",wr=['s98','s99'],kind='smem'); a.wait(lgkm=0)
    a.valu('v_mov_b32',vr[0],S(98)); a.valu('v_mov_b32',vr[1],4*dw)
    a.salu('s_mov_b64','exec',1)
    a.batomic(op,vr[0],vr[1],sDBG,'0',mods='sc1')
    a.salu('s_mov_b64','exec',-1)
K0='rs_pro_kernel'
a.label(K0)
a.salu('s_cmp_ge_u32',S(2),256,ndst=0); a.branch('s_cbranch_scc1','L_end0')
load_srds(a)
par_setup(a)
a.salu('s_cmp_lg_u32',S(2),0,ndst=0); a.branch('s_cbranch_scc1','L_nz')
for k in range(4): a.valu('v_mov_b32',V(12+k),0)
a.valu('v_lshlrev_b32',V(16),4,vT); a.salu('s_mov_b32',sA,FL)
for k in range(NFLG*128//4096): a.bstore('buffer_store_dwordx4',V(12,4),V(16),sWS,sA); a.salu('s_add_u32',sA,sA,4096)
a.label('L_nz')
if 'nopre' not in EXP:
    a.valu('v_lshlrev_b32',V(16),4,vT); a.salu('s_mul_i32',sA,S(2),20480)
    for srd in (sWq,sWk,sWv,sWo):
        for k in range(5):
            a.salu('s_add_u32',sB,sA,4096*k); a.bload('buffer_load_dwordx4',V(84+4*(k%2),4),V(16),srd,sB).wr=set()
a.salu('s_mov_b32',sI,S(2)); task_ln(a)
a.label('L_end0')
a.raw('s_endpgm')
a.raw('.p2align 8',kind='comment').text='.p2align 8'
a.label(KN)
a.salu('s_cmp_ge_u32',S(2),256,ndst=0); a.branch('s_cbranch_scc1','L_end')
load_srds(a)
a.salu('s_mov_b32',S(101),0)
a.raw("s_getreg_b32 s3, hwreg(HW_REG_XCC_ID)",wr=['s3'],kind='salu')
a.salu('s_and_b32',S(3),S(3),15)
t=V(12); z=V(13); sv=S(4,2)
def bcast_atomic(off,val,dst):
    a.valu('v_mov_b32',t,val); a.valu('v_mov_b32',z,off)
    a.valu('v_cmp_eq_u32','vcc',0,vT); a.salu('s_and_saveexec_b64',sv,'vcc')
    lbl=f'L_ba{len(a.ins)}'
    a.branch('s_cbranch_execz',lbl)
    a.batomic('buffer_atomic_add',t,z,sWS,'0',ret=True,mods='sc1')
    a.wait(vm=0)
    a.valu('v_mov_b32',z,163832); a.ds_write('ds_write_b32',z,t)
    a.label(lbl)
    a.salu('s_mov_b64','exec',sv)
    a.wait(lgkm=0); a.barrier()
    a.valu('v_mov_b32',z,163832); a.ds_read('ds_read_b32',t,z); a.wait(lgkm=0)
    a.valu('v_readfirstlane_b32',dst,t)
    a.barrier()
prof(55)
a.salu('s_cmp_lg_u32',S(3),0,ndst=0); a.branch('s_cbranch_scc1','L_par')
bcast_atomic(O_CHT,1,sH)
a.salu('s_cmp_lt_u32',sH,32,ndst=0); a.branch('s_cbranch_scc1','L_chain')
a.label('L_par')
par_setup(a)
a.salu('s_add_u32',S(96),S(3),6); a.salu('s_mul_hi_u32',sA,S(96),'0x24924925'); a.salu('s_mul_i32',sA,sA,7); a.salu('s_sub_u32',S(96),S(96),sA); a.salu('s_mov_b32',S(97),0)
a.branch('s_branch','L_deq')
a.label('L_next')
a.valu('v_mov_b32',z,O_CHT)
a.salu('s_cmp_lg_u32',sWv_,0,ndst=0); a.branch('s_cbranch_scc1','L_fb0')
a.bload('buffer_load_dword',t,z,sWS,'0',mods='sc1')
a.valu('v_mov_b32',z,163828); a.ds_write('ds_write_b32',z,t)
a.label('L_fb0')
a.wait(lgkm=0); a.barrier()
a.valu('v_mov_b32',z,163828); a.ds_read('ds_read_b32',t,z); a.wait(lgkm=0); a.valu('v_readfirstlane_b32',sA,t)
a.salu('s_cmp_ge_u32',sA,32,ndst=0); a.branch('s_cbranch_scc1','L_deq')
bcast_atomic(O_CHT,1,sH)
a.salu('s_cmp_lt_u32',sH,32,ndst=0); a.branch('s_cbranch_scc1','L_chain')
par_setup(a)
a.label('L_deq')
sQ=S(96); sPh=S(97)
a.salu('s_cmp_lg_u32',sPh,0,ndst=0); a.branch('s_cbranch_scc1','L_phB')
a.label('L_qtry')
a.salu('s_lshl_b32',sA,sQ,7); a.salu('s_add_u32',sA,sA,O_Q)
bcast_atomic(sA,1,sTask)
a.salu('s_cmp_lt_u32',sTask,64,ndst=0); a.branch('s_cbranch_scc1','L_qgot')
a.valu('v_lshlrev_b32',z,7,pLane); a.valu('v_mov_b32',t,64)
a.salu('s_mov_b32',sA,O_Q); a.salu('s_mov_b64','exec',0x7f)
a.bload('buffer_load_dword',t,z,sWS,sA,mods='sc1').rd.add('v12')
a.salu('s_mov_b64','exec',-1)
a.valu('v_cmp_gt_u32','vcc',64,t)
a.salu('s_and_b32',sA,'vcc_lo',0x7f)
a.valu('v_mov_b32',t,sA); a.valu('v_mov_b32',z,163828)
a.salu('s_cmp_lg_u32',sWv_,0,ndst=0); a.branch('s_cbranch_scc1','L_q1')
a.ds_write('ds_write_b32',z,t)
a.label('L_q1')
a.wait(lgkm=0); a.barrier()
a.ds_read('ds_read_b32',t,z); a.wait(lgkm=0); a.valu('v_readfirstlane_b32',sA,t); a.barrier()
a.salu('s_cmp_eq_u32',sA,0,ndst=0); a.branch('s_cbranch_scc1','L_toB')
a.salu('s_ff1_i32_b32',sQ,sA)
a.branch('s_branch','L_qtry')
a.label('L_toB')
a.salu('s_mov_b32',sPh,1); a.branch('s_branch','L_phB')
a.label('L_qgot')
a.salu('s_cmp_lt_u32',sQ,2,ndst=0); a.branch('s_cbranch_scc0','L_d2')
a.salu('s_cmp_lt_u32',sTask,48,ndst=0); a.branch('s_cbranch_scc0','L_d1o')
a.salu('s_mul_hi_u32',sRB,sTask,'0x55555556'); a.salu('s_mul_i32',sB,sRB,3); a.salu('s_sub_u32',sB,sTask,sB); a.branch('s_branch','L_dkv')
a.label('L_d1o')
a.salu('s_sub_u32',sRB,sTask,48); a.salu('s_mov_b32',sA,sQ); a.branch('s_branch','L_doth')
a.label('L_d2')
a.salu('s_cmp_lt_u32',sTask,32,ndst=0); a.branch('s_cbranch_scc0','L_d2o')
a.salu('s_lshr_b32',sRB,sTask,1); a.salu('s_and_b32',sB,sTask,1); a.branch('s_branch','L_dkv')
a.label('L_d2o')
a.salu('s_sub_u32',sB,sTask,32); a.salu('s_lshr_b32',sRB,sB,1); a.salu('s_and_b32',sB,sB,1)
a.salu('s_lshl_b32',sA,sQ,1); a.salu('s_sub_u32',sA,sA,2); a.salu('s_add_u32',sA,sA,sB); a.branch('s_branch','L_doth')
a.label('L_dkv')
a.salu('s_mul_i32',sA,sB,7); a.salu('s_add_u32',sA,sA,sQ)
a.salu('s_and_b32',sB,sA,7); a.salu('s_lshl_b32',sB,sB,2); a.salu('s_add_u32',sJ,sB,sWv_)
a.salu('s_cmp_ge_u32',sA,8,ndst=0); a.branch('s_cbranch_scc1','L_tv')
task_kq(a,'gk',sWk,KX,F_KV); prof(61); a.branch('s_branch','L_next')
a.label('L_tv'); task_v(a); a.branch('s_branch','L_next')
a.label('L_doth')
a.salu('s_and_b32',sB,sA,7); a.salu('s_lshl_b32',sB,sB,2); a.salu('s_add_u32',sJ,sB,sWv_)
a.salu('s_cmp_ge_u32',sA,8,ndst=0); a.branch('s_cbranch_scc1','L_tf')
task_kq(a,'gq',sWq,QX,F_Q); a.branch('s_branch','L_next')
a.label('L_tf'); task_f1(a); prof(62); a.branch('s_branch','L_next')
a.label('L_phB')
bcast_atomic(O_TASK,1,sTask)
a.salu('s_cmp_lt_u32',sTask,66*18,ndst=0); a.branch('s_cbranch_scc0','L_end')
a.salu('s_mul_hi_u32',sI,sTask,'0x0e38e38f'); a.salu('s_mul_i32',sB,sI,18); a.salu('s_sub_u32',sA,sTask,sB)
a.salu('s_cmp_ge_u32',sA,8,ndst=0); a.branch('s_cbranch_scc1','L_tfin')
a.salu('s_cmp_ge_u32',sI,64,ndst=0); a.branch('s_cbranch_scc1','L_next')
a.salu('s_lshl_b32',sB,sA,2); a.salu('s_add_u32',sJ,sB,sWv_)
task_at(a); a.branch('s_branch','L_next')
a.label('L_tfin')
a.salu('s_cmp_lt_u32',sI,2,ndst=0); a.branch('s_cbranch_scc1','L_next')
a.salu('s_sub_u32',sI,sI,2); a.salu('s_sub_u32',sJ,sA,8)
task_fin(a); prof(60); a.branch('s_branch','L_next')
a.label('L_chain')
prof(56)
chain_setup(a)
chain_init_comm(a)
a.wait(vm=0); a.barrier()
a.salu('s_lshl_b32',sT0,1,S(3))
a.valu('v_mov_b32',P(0),sT0); a.valu('v_mov_b32',P(1),O_CHBAR+4); a.valu('v_mov_b32',P(2),1); a.valu('v_mov_b32',P(3),O_CHBAR)
a.salu('s_cmp_lg_u32',sW,0,ndst=0); a.branch('s_cbranch_scc1','L_ch0')
a.salu('s_mov_b64','exec',1)
a.batomic('buffer_atomic_or',P(0),P(1),sWS,'0',mods='sc1'); a.wait(vm=0)
a.batomic('buffer_atomic_add',P(2),P(3),sWS,'0',mods='sc1')
a.salu('s_mov_b64','exec',-1)
a.label('L_ch0')
chain_load_weights(a)
prof(57,vr=(P(70),P(71)))
cuid=[0]
def kv_wait(a,first=False):
    cuid[0]+=1; l=f'L_kvw{cuid[0]}'
    if first: a.salu('s_mov_b32',sT0,O_RB)
    else:
        a.salu('s_add_u32',sT0,sStep,1); a.salu('s_and_b32',sT1,sT0,3); a.salu('s_cmp_lg_u32',sT1,0,ndst=0); a.branch('s_cbranch_scc1',l+'d')
        a.salu('s_cmp_ge_u32',sT0,64,ndst=0); a.branch('s_cbranch_scc1',l+'d')
        a.salu('s_lshl_b32',sT0,sT0,5); a.salu('s_add_u32',sT0,sT0,O_RB)
    a.valu('v_mov_b32',P(41),0)
    a.label(l)
    guard(a)
    a.bload('buffer_load_dword',P(40),P(41),sWS,sT0,mods='sc1')
    a.valu('v_bfe_u32',P(40),P(40),F_KV,6); a.valu('v_cmp_le_u32','vcc',16,P(40))
    a.branch('s_cbranch_vccnz',l+'d')
    a.raw('s_sleep 4'); a.branch('s_branch',l)
    a.label(l+'d')
kv_wait(a,True)
a.valu('v_mov_b32',P(4),O_CHBAR)
a.label('L_arr')
guard(a)
a.bload('buffer_load_dwordx2',P(0,2),P(4),sWS,'0',mods='sc1')
a.valu('v_cmp_gt_u32','vcc',32,P(0))
a.branch('s_cbranch_vccnz','L_arr')
a.valu('v_readfirstlane_b32',S(6),P(1))
chain_first(a)
prof(58,vr=(P(76),P(77)))
def prog(a):
    cuid[0]+=1; l=f'L_pg{cuid[0]}'
    a.salu('s_cmp_lg_u32',sW,3,ndst=0); a.branch('s_cbranch_scc1',l+'e')
    a.salu('s_cmp_lg_u32',sH,0,ndst=0); a.branch('s_cbranch_scc1',l)
    a.salu('s_sub_u32',sT0,sStep,3); a.valu('v_mov_b32',P(42),sT0); a.valu('v_mov_b32',P(43),O_PROG)
    a.salu('s_mov_b64','exec',1)
    a.bstore('buffer_store_dword',P(42),P(43),sWS,'0',mods='sc1')
    a.salu('s_mov_b64','exec',-1)
    a.label(l)
    kv_wait(a)
    a.label(l+'e')
a.salu('s_bcnt1_i32_b32',sT0,S(6)); a.salu('s_cmp_lg_u32',sT0,1,ndst=0); a.branch('s_cbranch_scc1','L_slow')
chain_loop(a,'','f',D1,D2,prog=prog)
a.branch('s_branch','L_chend')
a.label('L_slow')
chain_loop(a,'sc1','s',D1,D2,prog=prog)
a.label('L_chend')
prof(59,vr=(P(70),P(71)))
a.wait(vm=0); a.barrier()
a.salu('s_cmp_lg_u32',sW,0,ndst=0); a.branch('s_cbranch_scc1','L_end')
a.valu('v_mov_b32',P(0),1); a.valu('v_mov_b32',P(1),O_PROG+4)
a.salu('s_mov_b64','exec',1)
a.batomic('buffer_atomic_add',P(0),P(1),sWS,'0',mods='sc1')
a.label('L_end')
a.raw('s_endpgm')
a.auto_wait(); a.hazards()
ref=open('recurrent_scan__memory_aug_recurrent_mem_tr__dense_activation_squared_relu__prompt.s.ref').read()
hdr=ref[:ref.index('; Override launch geometry')]+f"""; @launch kernel={K0} grid=(256,1,1) block=(256,1,1) lds=0
; @launch kernel={KN} grid=(256,1,1) block=(256,1,1) lds=163840
.amdgcn_target "amdgcn-amd-amdhsa--gfx950"
.text
.globl {KN}
.type {KN},@function
.globl {K0}
.type {K0},@function
.p2align 8
"""
ftr=f"""
.section .rodata,"a"
.p2align 6
.amdhsa_kernel {K0}
  .amdhsa_next_free_vgpr 96
  .amdhsa_next_free_sgpr 102
  .amdhsa_accum_offset 96
  .amdhsa_group_segment_fixed_size 0
  .amdhsa_kernarg_size 120
  .amdhsa_user_sgpr_count 2
  .amdhsa_user_sgpr_kernarg_segment_ptr 1
  .amdhsa_system_sgpr_workgroup_id_x 1
.end_amdhsa_kernel
.p2align 6
.amdhsa_kernel {KN}
  .amdhsa_next_free_vgpr 512
  .amdhsa_next_free_sgpr 102
  .amdhsa_accum_offset 256
  .amdhsa_group_segment_fixed_size 0
  .amdhsa_kernarg_size 120
  .amdhsa_user_sgpr_count 2
  .amdhsa_user_sgpr_kernarg_segment_ptr 1
  .amdhsa_system_sgpr_workgroup_id_x 1
.end_amdhsa_kernel
"""
out=sys.argv[1] if len(sys.argv)>1 else 'recurrent_scan__memory_aug_recurrent_mem_tr__dense_activation_squared_relu__prompt.s'
open(out,'w').write(hdr+a.text()+ftr)
print(len(a.ins),'instructions')
```

```python
import sys
from par import *
KN='recurrent_scan__memory_aug_recurrent_mem_tr__dense_activation_squared_relu__prompt_kernel'
D1,D2=1,0
a=Asm()
PROF=os.environ.get('PROF','')=='1'
def prof(dw,op='buffer_atomic_umax',vr=(V(20),V(21))):
    if not PROF: return
    a.raw("s_memrealtime s[98:99]",wr=['s98','s99'],kind='smem'); a.wait(lgkm=0)
    a.valu('v_mov_b32',vr[0],S(98)); a.valu('v_mov_b32',vr[1],4*dw)
    a.salu('s_mov_b64','exec',1)
    a.batomic(op,vr[0],vr[1],sDBG,'0',mods='sc1')
    a.salu('s_mov_b64','exec',-1)
K0='rs_pro_kernel'
a.label(K0)
a.salu('s_cmp_ge_u32',S(2),256,ndst=0); a.branch('s_cbranch_scc1','L_end0')
load_srds(a)
par_setup(a)
a.salu('s_cmp_lg_u32',S(2),0,ndst=0); a.branch('s_cbranch_scc1','L_nz')
for k in range(4): a.valu('v_mov_b32',V(12+k),0)
a.valu('v_lshlrev_b32',V(16),4,vT); a.salu('s_mov_b32',sA,FL)
for k in range(NFLG*128//4096): a.bstore('buffer_store_dwordx4',V(12,4),V(16),sWS,sA); a.salu('s_add_u32',sA,sA,4096)
a.label('L_nz')
if 'nopre' not in EXP:
    a.valu('v_lshlrev_b32',V(16),4,vT); a.salu('s_mul_i32',sA,S(2),20480)
    for srd in (sWq,sWk,sWv,sWo):
        for k in range(5):
            a.salu('s_add_u32',sB,sA,4096*k); a.bload('buffer_load_dwordx4',V(84+4*(k%2),4),V(16),srd,sB).wr=set()
a.salu('s_mov_b32',sI,S(2)); task_ln(a)
a.label('L_end0')
a.raw('s_endpgm')
a.raw('.p2align 8',kind='comment').text='.p2align 8'
a.label(KN)
a.salu('s_cmp_ge_u32',S(2),256,ndst=0); a.branch('s_cbranch_scc1','L_end')
load_srds(a)
a.salu('s_mov_b32',S(101),0)
a.raw("s_getreg_b32 s3, hwreg(HW_REG_XCC_ID)",wr=['s3'],kind='salu')
a.salu('s_and_b32',S(3),S(3),15)
t=V(12); z=V(13); sv=S(4,2)
def bcast_atomic(off,val,dst):
    a.valu('v_mov_b32',t,val); a.valu('v_mov_b32',z,off)
    a.valu('v_cmp_eq_u32','vcc',0,vT); a.salu('s_and_saveexec_b64',sv,'vcc')
    lbl=f'L_ba{len(a.ins)}'
    a.branch('s_cbranch_execz',lbl)
    a.batomic('buffer_atomic_add',t,z,sWS,'0',ret=True,mods='sc1')
    a.wait(vm=0)
    a.valu('v_mov_b32',z,163832); a.ds_write('ds_write_b32',z,t)
    a.label(lbl)
    a.salu('s_mov_b64','exec',sv)
    a.wait(lgkm=0); a.barrier()
    a.valu('v_mov_b32',z,163832); a.ds_read('ds_read_b32',t,z); a.wait(lgkm=0)
    a.valu('v_readfirstlane_b32',dst,t)
    a.barrier()
prof(55)
a.salu('s_cmp_lg_u32',S(3),0,ndst=0); a.branch('s_cbranch_scc1','L_par')
bcast_atomic(O_CHT,1,sH)
a.salu('s_cmp_lt_u32',sH,32,ndst=0); a.branch('s_cbranch_scc1','L_chain')
a.label('L_par')
par_setup(a)
a.salu('s_add_u32',S(96),S(3),6); a.salu('s_mul_hi_u32',sA,S(96),'0x24924925'); a.salu('s_mul_i32',sA,sA,7); a.salu('s_sub_u32',S(96),S(96),sA); a.salu('s_mov_b32',S(97),0)
if 'warm' in EXP:
    a.valu('v_lshlrev_b32',V(16),4,vT); a.salu('s_mul_i32',sA,S(2),20480)
    for srd in (sWq,sWk,sWv,sWo):
        for k in range(5):
            a.salu('s_add_u32',sB,sA,4096*k); a.bload('buffer_load_dwordx4',V(220+4*(k%2),4),V(16),srd,sB,mods='nt').wr=set()
a.branch('s_branch','L_deq')
a.label('L_next')
a.valu('v_mov_b32',z,O_CHT)
a.salu('s_cmp_lg_u32',sWv_,0,ndst=0); a.branch('s_cbranch_scc1','L_fb0')
a.bload('buffer_load_dword',t,z,sWS,'0',mods='sc1')
a.valu('v_mov_b32',z,163828); a.ds_write('ds_write_b32',z,t)
a.label('L_fb0')
a.wait(lgkm=0); a.barrier()
a.valu('v_mov_b32',z,163828); a.ds_read('ds_read_b32',t,z); a.wait(lgkm=0); a.valu('v_readfirstlane_b32',sA,t)
a.salu('s_cmp_ge_u32',sA,32,ndst=0); a.branch('s_cbranch_scc1','L_deq')
bcast_atomic(O_CHT,1,sH)
a.salu('s_cmp_lt_u32',sH,32,ndst=0); a.branch('s_cbranch_scc1','L_chain')
par_setup(a)
a.label('L_deq')
sQ=S(96); sPh=S(97)
a.salu('s_cmp_lg_u32',sPh,0,ndst=0); a.branch('s_cbranch_scc1','L_phB')
a.label('L_qtry')
a.salu('s_lshl_b32',sA,sQ,7); a.salu('s_add_u32',sA,sA,O_Q)
bcast_atomic(sA,1,sTask)
a.salu('s_cmp_lt_u32',sTask,64,ndst=0); a.branch('s_cbranch_scc1','L_qgot')
a.valu('v_lshlrev_b32',z,7,pLane); a.valu('v_mov_b32',t,64)
a.salu('s_mov_b32',sA,O_Q); a.salu('s_mov_b64','exec',0x7f)
a.bload('buffer_load_dword',t,z,sWS,sA,mods='sc1').rd.add('v12')
a.salu('s_mov_b64','exec',-1)
a.valu('v_cmp_gt_u32','vcc',64,t)
a.salu('s_and_b32',sA,'vcc_lo',0x7f)
a.valu('v_mov_b32',t,sA); a.valu('v_mov_b32',z,163828)
a.salu('s_cmp_lg_u32',sWv_,0,ndst=0); a.branch('s_cbranch_scc1','L_q1')
a.ds_write('ds_write_b32',z,t)
a.label('L_q1')
a.wait(lgkm=0); a.barrier()
a.ds_read('ds_read_b32',t,z); a.wait(lgkm=0); a.valu('v_readfirstlane_b32',sA,t); a.barrier()
a.salu('s_cmp_eq_u32',sA,0,ndst=0); a.branch('s_cbranch_scc1','L_toB')
a.salu('s_ff1_i32_b32',sQ,sA)
a.branch('s_branch','L_qtry')
a.label('L_toB')
a.salu('s_mov_b32',sPh,1); a.branch('s_branch','L_phB')
a.label('L_qgot')
a.salu('s_cmp_lt_u32',sQ,2,ndst=0); a.branch('s_cbranch_scc0','L_d2')
a.salu('s_cmp_lt_u32',sTask,48,ndst=0); a.branch('s_cbranch_scc0','L_d1o')
a.salu('s_mul_hi_u32',sRB,sTask,'0x55555556'); a.salu('s_mul_i32',sB,sRB,3); a.salu('s_sub_u32',sB,sTask,sB); a.branch('s_branch','L_dkv')
a.label('L_d1o')
a.salu('s_sub_u32',sRB,sTask,48); a.salu('s_mov_b32',sA,sQ); a.branch('s_branch','L_doth')
a.label('L_d2')
a.salu('s_cmp_lt_u32',sTask,32,ndst=0); a.branch('s_cbranch_scc0','L_d2o')
a.salu('s_lshr_b32',sRB,sTask,1); a.salu('s_and_b32',sB,sTask,1); a.branch('s_branch','L_dkv')
a.label('L_d2o')
a.salu('s_sub_u32',sB,sTask,32); a.salu('s_lshr_b32',sRB,sB,1); a.salu('s_and_b32',sB,sB,1)
a.salu('s_lshl_b32',sA,sQ,1); a.salu('s_sub_u32',sA,sA,2); a.salu('s_add_u32',sA,sA,sB); a.branch('s_branch','L_doth')
a.label('L_dkv')
if 'thr' in EXP:
    n=int(EXP.split('thr')[1].split('_')[0])
    a.salu('s_cmp_lt_u32',sRB,2,ndst=0); a.branch('s_cbranch_scc1','L_nothr')
    a.salu('s_cmp_ge_u32',sTask,32,ndst=0); a.branch('s_cbranch_scc1','L_nothr')
    for k in range(n): a.raw('s_sleep 127')
    a.label('L_nothr')
a.salu('s_mul_i32',sA,sB,7); a.salu('s_add_u32',sA,sA,sQ)
a.salu('s_and_b32',sB,sA,7); a.salu('s_lshl_b32',sB,sB,2); a.salu('s_add_u32',sJ,sB,sWv_)
a.salu('s_cmp_ge_u32',sA,8,ndst=0); a.branch('s_cbranch_scc1','L_tv')
task_kq(a,'gk',sWk,KX,F_KV); prof(61); a.branch('s_branch','L_next')
a.label('L_tv'); task_v(a); a.branch('s_branch','L_next')
a.label('L_doth')
a.salu('s_and_b32',sB,sA,7); a.salu('s_lshl_b32',sB,sB,2); a.salu('s_add_u32',sJ,sB,sWv_)
a.salu('s_cmp_ge_u32',sA,8,ndst=0); a.branch('s_cbranch_scc1','L_tf')
task_kq(a,'gq',sWq,QX,F_Q); a.branch('s_branch','L_next')
a.label('L_tf'); task_f1(a); prof(62); a.branch('s_branch','L_next')
a.label('L_phB')
bcast_atomic(O_TASK,1,sTask)
a.salu('s_cmp_lt_u32',sTask,66*18,ndst=0); a.branch('s_cbranch_scc0','L_end')
a.salu('s_mul_hi_u32',sI,sTask,'0x0e38e38f'); a.salu('s_mul_i32',sB,sI,18); a.salu('s_sub_u32',sA,sTask,sB)
a.salu('s_cmp_ge_u32',sA,8,ndst=0); a.branch('s_cbranch_scc1','L_tfin')
a.salu('s_cmp_ge_u32',sI,64,ndst=0); a.branch('s_cbranch_scc1','L_next')
a.salu('s_lshl_b32',sB,sA,2); a.salu('s_add_u32',sJ,sB,sWv_)
task_at(a); a.branch('s_branch','L_next')
a.label('L_tfin')
a.salu('s_cmp_lt_u32',sI,2,ndst=0); a.branch('s_cbranch_scc1','L_next')
a.salu('s_sub_u32',sI,sI,2); a.salu('s_sub_u32',sJ,sA,8)
task_fin(a); prof(60); a.branch('s_branch','L_next')
a.label('L_chain')
prof(56)
chain_setup(a)
chain_init_comm(a)
a.wait(vm=0); a.barrier()
a.salu('s_lshl_b32',sT0,1,S(3))
a.valu('v_mov_b32',P(0),sT0); a.valu('v_mov_b32',P(1),O_CHBAR+4); a.valu('v_mov_b32',P(2),1); a.valu('v_mov_b32',P(3),O_CHBAR)
a.salu('s_cmp_lg_u32',sW,0,ndst=0); a.branch('s_cbranch_scc1','L_ch0')
a.salu('s_mov_b64','exec',1)
a.batomic('buffer_atomic_or',P(0),P(1),sWS,'0',mods='sc1'); a.wait(vm=0)
a.batomic('buffer_atomic_add',P(2),P(3),sWS,'0',mods='sc1')
a.salu('s_mov_b64','exec',-1)
a.label('L_ch0')
chain_load_weights(a)
prof(57,vr=(P(70),P(71)))
cuid=[0]
sKVm=S(47)
a.salu('s_mov_b32',sKVm,0)
def kv_wait(a,first=False):
    cuid[0]+=1; l=f'L_kvw{cuid[0]}'
    if first: a.salu('s_mov_b32',sT0,0)
    else:
        a.salu('s_add_u32',sT0,sStep,1); a.salu('s_and_b32',sT1,sT0,3); a.salu('s_cmp_lg_u32',sT1,0,ndst=0); a.branch('s_cbranch_scc1',l+'d')
        a.salu('s_cmp_ge_u32',sT0,64,ndst=0); a.branch('s_cbranch_scc1',l+'d')
        a.salu('s_lshr_b32',sT0,sT0,2)
    a.salu('s_mov_b32',sT1,O_RB)
    a.valu('v_and_b32',P(41),0xf0,vL16); a.valu('v_lshlrev_b32',P(41),3,P(41))
    a.label(l)
    guard(a)
    a.salu('s_bitcmp1_b32',sKVm,sT0,ndst=0); a.branch('s_cbranch_scc1',l+'d')
    a.bload('buffer_load_dword',P(40),P(41),sWS,sT1,mods='sc1')
    a.valu('v_bfe_u32',P(40),P(40),F_KV,6); a.valu('v_cmp_le_u32','vcc',16,P(40))
    a.salu('s_and_b32',sKVm,'vcc_lo',0xffff)
    a.salu('s_bitcmp1_b32',sKVm,sT0,ndst=0); a.branch('s_cbranch_scc1',l+'d')
    a.raw('s_sleep 4'); a.branch('s_branch',l)
    a.label(l+'d')
kv_wait(a,True)
a.valu('v_mov_b32',P(4),O_CHBAR)
a.label('L_arr')
guard(a)
a.bload('buffer_load_dwordx2',P(0,2),P(4),sWS,'0',mods='sc1')
a.valu('v_cmp_gt_u32','vcc',32,P(0))
a.branch('s_cbranch_vccnz','L_arr')
a.valu('v_readfirstlane_b32',S(6),P(1))
sPG=S(46)
a.salu('s_lshl_b32',sT0,sH,2); a.salu('s_add_u32',sT0,sT0,sW); a.salu('s_lshl_b32',sT1,sT0,7); a.salu('s_add_u32',sT1,sT1,FL+0x8000)
a.salu('s_cmp_eq_u32',sT0,3,ndst=0); a.salu('s_cselect_b32',sPG,O_PROG,sT1)
def post_pub(a):
    a.salu('s_sub_u32',sT0,sStep,2); a.valu('v_mov_b32',P(24),sT0); a.valu('v_mov_b32',P(25),0)
    a.salu('s_mov_b64','exec',1)
    a.bstore('buffer_store_dword',P(24),P(25),sWS,sPG,mods='sc1')
    a.salu('s_mov_b64','exec',-1)
chain_first(a,post_pub)
prof(58,vr=(P(40),P(41)))
def prog(a):
    cuid[0]+=1; l=f'L_pg{cuid[0]}'
    a.salu('s_cmp_lg_u32',sW,3,ndst=0); a.branch('s_cbranch_scc1',l+'e')
    kv_wait(a)
    a.label(l+'e')
a.salu('s_bcnt1_i32_b32',sT0,S(6)); a.salu('s_cmp_lg_u32',sT0,1,ndst=0); a.branch('s_cbranch_scc1','L_slow')
chain_loop(a,'','f',D1,D2,prog=prog,post_pub=post_pub)
a.branch('s_branch','L_chend')
a.label('L_slow')
chain_loop(a,'sc1','s',D1,D2,prog=prog,post_pub=post_pub)
a.label('L_chend')
prof(59,vr=(P(70),P(71)))
a.wait(vm=0); a.barrier()
a.salu('s_cmp_lg_u32',sW,0,ndst=0); a.branch('s_cbranch_scc1','L_end')
a.valu('v_mov_b32',P(0),1); a.valu('v_mov_b32',P(1),O_PROG+4)
a.salu('s_mov_b64','exec',1)
a.batomic('buffer_atomic_add',P(0),P(1),sWS,'0',mods='sc1')
a.label('L_end')
a.raw('s_endpgm')
a.auto_wait(); a.hazards()
ref=open('recurrent_scan__memory_aug_recurrent_mem_tr__dense_activation_squared_relu__prompt.s.ref').read()
hdr=ref[:ref.index('; Override launch geometry')]+f"""; @launch kernel={K0} grid=(256,1,1) block=(256,1,1) lds=0
; @launch kernel={KN} grid=(256,1,1) block=(256,1,1) lds=163840
.amdgcn_target "amdgcn-amd-amdhsa--gfx950"
.text
.globl {KN}
.type {KN},@function
.globl {K0}
.type {K0},@function
.p2align 8
"""
ftr=f"""
.section .rodata,"a"
.p2align 6
.amdhsa_kernel {K0}
  .amdhsa_next_free_vgpr 96
  .amdhsa_next_free_sgpr 102
  .amdhsa_accum_offset 96
  .amdhsa_group_segment_fixed_size 0
  .amdhsa_kernarg_size 120
  .amdhsa_user_sgpr_count 2
  .amdhsa_user_sgpr_kernarg_segment_ptr 1
  .amdhsa_system_sgpr_workgroup_id_x 1
.end_amdhsa_kernel
.p2align 6
.amdhsa_kernel {KN}
  .amdhsa_next_free_vgpr 512
  .amdhsa_next_free_sgpr 102
  .amdhsa_accum_offset 256
  .amdhsa_group_segment_fixed_size 0
  .amdhsa_kernarg_size 120
  .amdhsa_user_sgpr_count 2
  .amdhsa_user_sgpr_kernarg_segment_ptr 1
  .amdhsa_system_sgpr_workgroup_id_x 1
.end_amdhsa_kernel
"""
out=sys.argv[1] if len(sys.argv)>1 else 'recurrent_scan__memory_aug_recurrent_mem_tr__dense_activation_squared_relu__prompt.s'
open(out,'w').write(hdr+a.text()+ftr)
print(len(a.ins),'instructions')
```

```python
from asmlib import *
import os
EXP=os.environ.get('EXP','')
XN=0x0; KX=0x0400000; VX=0x1400000; QX=0x2400000; HF=0x3400000; OX=0x3C00000
KMV=0x4C20000; PB=0x5480000; MB=0x5500000; SW=0x5600000; FL=0x5A00000
WS_BYTES=268435456
LMEM=131072; LKX=LMEM+10240; LVX=LKX+8192; LQE=LVX+8192; LKE=LQE+2048; LVE=LKE+2048
sX=S(8,4); sM0=S(12,4); sWq=S(16,4); sWk=S(20,4); sWv=S(24,4); sWo=S(28,4); sW1=S(32,4); sB1=S(36,4)
sW2=S(40,4); sB2=S(44,4); sOUT=S(48,4); sDBG=S(52,4); sWS=S(56,4)
SRDS=[(sX,0,2621440),(sM0,8,10240),(sWq,16,5242880),(sWk,24,5242880),(sWv,32,5242880),(sWo,40,5242880),
      (sW1,64,2211840),(sB1,72,3456),(sW2,80,2211840),(sB2,88,1280),(sOUT,96,2621440),(sDBG,104,256),(sWS,112,WS_BYTES)]
sH=S(60); sW=S(61); sStep=S(62); sTag=S(63); sMask=S(64); sUnit=S(65); sRSoff=S(66); sMSToff=S(67)
sPst=[S(68+i) for i in range(5)]; sAG=[S(73+i) for i in range(5)]; sSW=S(78); sKXo=S(79); sKMVo=S(80); sVXo=S(81)
sHi=S(82,2); sMaskP=S(84); sBM=S(85); sT0=S(86); sT1=S(87); sT2=S(88); sT3=S(89); sC=S(90,2); sT4=S(92); sT5=S(93); sPubL=S(94); sPerm=S(95)
sSWb=[S(32+i) for i in range(6)]
sDM=[S(40+i) for i in range(4)]
vT=V(0); vWT=V(1); vMEMr=V(2); vFR=V(3); vQEr=V(4); vVEr=V(5); vQEw=V(6); vMWA=V(7)
vPst=V(8); vMst=V(12+27); vNEG=V(9); vL16=V(10); vIdx=V(11); vJunk=V(0)
PB0=12
def P(i,n=1): return V(PB0+i,n)
WV0=PB0+84

SAFE=os.environ.get('SAFE','')=='1'
def guard(a):
    if SAFE:
        a.salu('s_add_u32',S(101),S(101),1); a.salu('s_cmp_gt_u32',S(101),0x300000,ndst=0); a.branch('s_cbranch_scc1','L_end')
def load_srds(a):
    for srd,off,n in SRDS:
        a.raw(f"s_load_dwordx2 {S(srd.i,2)}, s[0:1], {off}", wr=S(srd.i,2).regs(), kind='smem')
    a.wait(lgkm=0)
    for srd,off,n in SRDS:
        a.salu('s_and_b32', srd[1], srd[1], '0xffff')
        a.salu('s_mov_b32', srd[2], str(n))
        a.salu('s_mov_b32', srd[3], '0x00020000')

LDS_SLABS=[('q',1),('q',3),('q',5),('q',7),('q',9),('o',1,0),('o',2,0),('o',3,0)]
STREAM=[('k',1,0),('k',1,1),('k',2,0),('k',2,1), ('k',8,0),('k',8,1),('k',9,0),('k',9,1),('v',9,1), ('o',4,0,1),('o',4,1,0),('o',4,1,1)]
ALL_SLABS=[(m,ks) for ks in range(10) for m in 'qk']+[('v',ks) for ks in range(10)]+[('o',i,k2) for i in range(5) for k2 in range(2)]
tile_loc={}
_res=[V(WV0+8*i,8) for i in range(20)]+[A(8*i,8) for i in range(32)]
_ri=0
for sl in ALL_SLABS:
    for ct in range(2):
        t=sl+(ct,)
        if sl in LDS_SLABS: tile_loc[t]=('lds',LDS_SLABS.index(sl)*2+ct)
        elif t in STREAM: tile_loc[t]=('str',STREAM.index(t))
        else: tile_loc[t]=('reg',_res[_ri]); _ri+=1
assert _ri==len(_res)==52, _ri

def chain_setup(a):
    L=P(0); g=P(1); n=P(2); t1=P(3); t2=P(4); t3=P(5); u=P(6)
    a.valu('v_and_b32',L,63,vT)
    a.valu('v_lshrrev_b32',t1,6,vT)
    a.valu('v_readfirstlane_b32',sW,t1)
    a.valu('v_lshrrev_b32',g,4,L)
    a.valu('v_and_b32',n,15,L)
    a.valu('v_lshlrev_b32',vL16,4,L)
    a.salu('s_lshl_b32',sT0,sW,15)
    a.valu('v_add_u32',vWT,sT0,vL16)
    a.valu('v_and_b32',t1,7,L); a.valu('v_xor_b32',t1,t1,g); a.valu('v_lshl_add_u32',t1,g,3,t1)
    a.valu('v_lshlrev_b32',t1,4,t1)
    a.valu('v_add_u32',vMEMr,LMEM,t1)
    a.valu('v_add_u32',vFR,LMEM,vL16)
    a.valu('v_lshrrev_b32',t1,2,L); a.valu('v_lshlrev_b32',t1,4,t1); a.valu('v_and_b32',t2,1,L); a.valu('v_lshl_add_u32',t1,t2,3,t1)
    a.valu('v_add_u32',vQEr,LQE,t1)
    g2=P(7); ct=P(8)
    a.valu('v_and_b32',g2,1,g); a.valu('v_lshrrev_b32',ct,1,g)
    a.valu('v_lshlrev_b32',t1,4,n); a.valu('v_lshl_add_u32',t1,g2,3,t1); a.valu('v_add_u32',vVEr,LVE,t1)
    a.valu('v_lshl_add_u32',t1,ct,8,t1)
    a.salu('s_lshl_b32',sT0,sW,9); a.salu('s_add_u32',sT0,sT0,LQE)
    a.valu('v_add_u32',vQEw,sT0,t1)
    rh=P(9); gg=P(10)
    a.valu('v_lshrrev_b32',u,1,vT); a.valu('v_and_b32',rh,1,vT)
    a.valu('v_bfe_u32',gg,u,2,2)
    a.valu('v_lshlrev_b32',t1,2,rh); a.valu('v_xor_b32',t1,t1,gg); a.valu('v_lshl_add_u32',t1,gg,3,t1)
    a.valu('v_lshlrev_b32',t1,4,t1)
    a.valu('v_lshrrev_b32',t2,4,u); a.valu('v_lshl_add_u32',t2,t2,9,t1)
    a.valu('v_and_b32',t3,3,u); a.valu('v_lshl_add_u32',t2,t3,2,t2)
    a.valu('v_add_u32',vMWA,LMEM,t2)
    a.valu('v_lshrrev_b32',t1,3,n); a.valu('v_lshl_add_u32',t1,ct,1,t1); a.valu('v_lshlrev_b32',t1,12,t1)
    a.valu('v_and_b32',t2,7,n); a.valu('v_lshl_add_u32',t1,t2,4,t1); a.valu('v_lshl_add_u32',vPst,g2,3,t1)
    a.valu('v_cmp_le_u32',sHi,8,n)
    a.valu('v_mov_b32',t1,'0x4444'); a.valu('v_mov_b32',t2,'0xeeee')
    a.valu('v_cndmask_b32',vIdx,t1,t2,sHi)
    a.valu('v_cmp_le_u32','vcc',1,ct); a.valu('v_mov_b32',t1,'0x10000'); a.valu('v_mov_b32',t2,'0xf149f2ca')
    a.valu('v_cndmask_b32',vNEG,t1,t2,'vcc')
    a.salu('s_add_u32',sUnit,sH,48); a.salu('s_cmp_eq_u32',sW,0,ndst=0); a.salu('s_cselect_b32',sUnit,sH,sUnit)
    a.salu('s_add_u32',sT0,sH,32); a.salu('s_cmp_lt_u32',sH,16,ndst=0); a.salu('s_cselect_b32',sT0,sT0,99)
    a.salu('s_cmp_eq_u32',sW,2,ndst=0); a.salu('s_cselect_b32',sUnit,sT0,sUnit)
    a.salu('s_cmp_eq_u32',sW,3,ndst=0); a.salu('s_cselect_b32',sUnit,99,sUnit)
    a.salu('s_lshl_b32',sRSoff,sUnit,12); a.salu('s_add_u32',sRSoff,sRSoff,PB)
    a.salu('s_lshl_b32',sMSToff,sUnit,8); a.salu('s_add_u32',sMSToff,sMSToff,MB)
    a.salu('s_mul_i32',sT0,sW,3*16384); a.salu('s_lshl_b32',sT1,sH,7); a.salu('s_add_u32',sT0,sT0,sT1); a.salu('s_add_u32',sPst[0],sT0,PB)
    for i in range(1,3): a.salu('s_add_u32',sPst[i],sPst[i-1],16384)
    a.salu('s_mul_i32',sT0,sW,2*16384); a.salu('s_add_u32',sT0,sT0,sT1); a.salu('s_add_u32',sPst[3],sT0,PB+12*16384); a.salu('s_add_u32',sPst[4],sPst[3],16384)
    a.salu('s_lshl_b32',sT0,sW,10)
    for i in range(5): a.salu('s_add_u32',sAG[i],sT0,MB+4096*i)
    a.salu('s_lshl_b32',sT1,sW,9); a.salu('s_add_u32',sPubL,sT1,LKE)
    a.salu('s_lshl_b32',sT0,sH,2); a.salu('s_add_u32',sT0,sT0,sW); a.salu('s_lshl_b32',sT0,sT0,15); a.salu('s_add_u32',sSW,sT0,SW)
    for i in range(6): a.salu('s_add_u32',sSWb[i],sSW,4096*i)
    a.salu('s_lshl_b32',sT0,sH,13)
    a.salu('s_add_u32',sKXo,sT0,KX); a.salu('s_add_u32',sVXo,sT0,VX)
    a.salu('s_lshl_b32',sT0,sH,12); a.salu('s_lshl_b32',sT1,sW,9); a.salu('s_add_u32',sT0,sT0,sT1); a.salu('s_add_u32',sKMVo,sT0,KMV-32*4096)
    a.salu('s_mov_b32',sC[0],'0x3e0293ee'); a.salu('s_mov_b32',sC[1],'0x3e0293ee')
    a.salu('s_lshl_b32',sDM[0],sW,11)
    a.salu('s_mov_b32',sStep,0)
    a.salu('s_mov_b32',sBM,'0x10001'); a.salu('s_mov_b32',sMaskP,1); a.salu('s_mov_b32',sPerm,'0x07060302')
    a.salu('s_mov_b32',sTag,2); a.salu('s_mov_b32',sMask,1)

def mk_mst(a):
    a.valu('v_and_b32',vMst,0xfff,vPst); a.valu('v_lshlrev_b32',vMst,1,vMst)
def chain_init_comm(a):
    one=P(0,4)
    a.valu('v_mov_b32',one[0],1); a.valu('v_mov_b32',one[1],1)
    for i in range(5): a.bstore('buffer_store_dwordx2',one[0:2],vPst,sWS,sPst[i],mods='sc1')
    a.salu('s_cmp_ge_u32',sUnit,80,ndst=0); a.branch('s_cbranch_scc1','L_ci_skip')
    for k in range(4): a.valu('v_mov_b32',P(4+k),2)
    mk_mst(a)
    a.bstore('buffer_store_dwordx4',P(4,4),vMst,sWS,sMSToff,mods='sc1')
    a.label('L_ci_skip')

def dma_kv(a):
    for k,(soff,base) in enumerate(((sKXo,LKX),(sVXo,LVX))):
        for hf in range(2):
            a.salu('s_mov_b32','m0',base+4096*hf)
            if hf: a.salu('s_add_u32',sT1,soff,4096)
            for j in range(4):
                a.bload_lds('buffer_load_dwordx4',vL16,sWS,sT1 if hf else soff,off=1024*j,mods='sc1')
def dma_part(a,soff,base,sm0):
    a.salu('s_add_u32','m0',sm0,base); a.salu('s_add_u32',sT1,soff,sm0)
    for j in range(2): a.bload_lds('buffer_load_dwordx4',vL16,sWS,sT1,off=1024*j,mods='sc1')
def spf_kv(a):
    for soff in (sKXo,sVXo):
        a.salu('s_add_u32',sT1,soff,sDM[0])
        for j in range(16):
            a.raw(f"s_buffer_load_dword {sDM[1]}, {sWS}, {sT1} offset:{128*j}" if False else f"s_buffer_load_dword {sDM[1]}, {sWS}, {sT1}",kind='other')
            if j<15: a.salu('s_add_u32',sT1,sT1,128)
def publish(a,tmp):
    if 'nopub' in EXP: return
    a.valu('v_and_b32',vT,0x1f0,vL16); a.valu('v_and_b32',tmp[0],0x200,vL16); a.valu('v_lshl_add_u32',vT,tmp[0],2,vT)
    a.valu('v_add_u32',tmp[0],sPubL,vT)
    a.ds_read('ds_read_b128',tmp,tmp[0])
    a.bstore('buffer_store_dwordx4',tmp,vT,sWS,sKMVo,mods='sc1')
def prefetch_kv(a,tmp):
    if 'nopf' in EXP: return
    a.valu('v_lshlrev_b32',vT,3,vL16)
    a.salu('s_add_u32',sT1,sKXo,32*8192); a.salu('s_add_u32',sT2,sVXo,32*8192)
    a.salu('s_bitcmp0_b32',sW,0,ndst=0); a.salu('s_cselect_b32',sT1,sT1,sT2)
    a.bload('buffer_load_dword',tmp,vT,sWS,sT1,mods='sc1')

def chain_load_weights(a):
    vq=P(0); vo=P(1); ta=P(2); tb=P(3); tc=P(4); L=P(5); gB=P(6); r=P(7); c=P(8); t1=P(9); t2=P(10)
    a.valu('v_and_b32',L,63,vT); a.valu('v_lshrrev_b32',gB,4,L); a.valu('v_bfe_u32',r,L,2,2); a.valu('v_and_b32',c,3,L)
    a.valu('v_lshrrev_b32',t1,2,L); a.valu('v_lshlrev_b32',t2,4,c)
    a.valu('v_lshl_add_u32',vq,t1,13,t2)
    a.salu('s_movk_i32',sT0,1280); a.valu('v_mul_lo_u32',t1,t1,sT0); a.valu('v_add_u32',vo,t1,t2)
    a.salu('s_lshl_b32',sT0,sW,15)
    r0=P(11); r1=P(12); b0=P(13); b1=P(14)
    a.valu('v_and_b32',r0,1,r); a.valu('v_lshrrev_b32',r1,1,r); a.valu('v_and_b32',b0,1,gB); a.valu('v_lshrrev_b32',b1,1,gB)
    cp=P(15)
    a.valu('v_lshlrev_b32',cp,3,c); a.valu('v_lshl_add_u32',cp,r1,5,cp); a.valu('v_add_u32',cp,sT0,cp)
    a.valu('v_lshlrev_b32',t1,5,r0); a.valu('v_lshl_add_u32',t1,b1,2,t1); a.valu('v_lshl_add_u32',t1,b0,1,t1); a.valu('v_lshl_add_u32',ta,t1,6,cp)
    a.valu('v_lshl_add_u32',t1,b0,4,r0); a.valu('v_lshl_add_u32',t1,b1,2,t1); a.valu('v_lshl_add_u32',tc,t1,6,cp)
    a.salu('s_lshl_b32',sT2,sH,8); a.salu('s_lshl_b32',sT1,sW,6); a.salu('s_add_u32',sT2,sT2,sT1)
    a.salu('s_mul_i32',sT3,sH,163840); a.salu('s_mul_i32',sT1,sW,192); a.salu('s_add_u32',S(44),sT3,sT1); a.salu('s_lshl_b32',sT1,sW,7); a.salu('s_add_u32',S(45),sT3,sT1)
    a.salu('s_lshl_b32',sT4,sW,15)
    order=[s for s in ALL_SLABS if s not in LDS_SLABS]+LDS_SLABS
    def slot_of(n): return (n%8) if n<32 else (n-32)
    def issue(n):
        sl=order[n]; slot=slot_of(n)
        for j in range(4):
            a.salu('s_add_u32','m0',sT4,slot*4096+j*1024)
            if sl[0]=='o':
                _,i,k2=sl
                a.salu('s_add_u32',sT5,S(44) if i<3 else S(45),(64*k2+16*j)*1280+(i*64 if i<3 else 768+(i-3)*64))
                a.bload_lds('buffer_load_dwordx4',vo,sWo,sT5,mods='nt' if 'wnt' in EXP else '')
            else:
                m,ks=sl
                d0=(128*(j//2)+32*ks+16*(j%2)) if ks<4 else ((256+64*(ks-4)+16*j) if ks<6 else (128*(3+j//2)+32*(ks-6)+16*(j%2)))
                a.salu('s_add_u32',sT5,sT2,d0*8192)
                a.bload_lds('buffer_load_dwordx4',vq,{'q':sWq,'k':sWk,'v':sWv}[m],sT5,mods='nt' if 'wnt' in EXP else '')
    tmp=[P(16,8),P(24,8),P(32,8),P(40,8)]
    DEPTH=7
    for n in range(DEPTH): issue(n)
    pend=[]
    for n in range(DEPTH): pend += [n]*4
    for n in range(len(order)):
        sl=order[n]; slot=slot_of(n)
        last=max(k for k,x in enumerate(pend) if x==n)
        a.wait(vm=min(63,len(pend)-1-last)); pend=pend[last+1:]
        if sl[0]=='o': addr=tc; imm=lambda ip,ct:(32*ct+8*(ip//2)+2*(ip%2))*64
        elif sl[1] in (4,5): addr=tc; imm=lambda ip,ct:(32*ct+8*(ip//2)+2*(ip%2))*64
        else: addr=ta; imm=lambda ip,ct:(16*ct+8*(ip//2)+(ip%2))*64
        dst=[]
        for ct in range(2):
            loc=tile_loc[sl+(ct,)]
            d=loc[1] if loc[0]=='reg' else tmp[(2*n+ct)%4]
            dst.append(d)
            for ip in range(4):
                a.ds_read('ds_read_b64_tr_b16',d[2*ip:2*ip+2],addr,slot*4096+imm(ip,ct))
        a.wait(lgkm=0)
        for ct in range(2):
            loc=tile_loc[sl+(ct,)]
            if loc[0]=='str':
                for hf in range(2):
                    a.salu('s_add_u32',sT5,sSW,loc[1]*2048+hf*1024)
                    a.bstore('buffer_store_dwordx4',dst[ct][4*hf:4*hf+4],vL16,sWS,sT5); pend.append('s')
            elif loc[0]=='lds':
                for hf in range(2):
                    a.ds_write('ds_write_b128',vWT,dst[ct][4*hf:4*hf+4],loc[1]*2048+hf*1024)
        if n+DEPTH<len(order):
            issue(n+DEPTH); pend += [n+DEPTH]*4
    a.wait(vm=0,lgkm=0)

def stage_A(a, G):
    t=P(20,4); ad=P(28,4); bd=P(32,4)
    for r in range(4):
        a.valu('v_perm_b32',t[r],G[4+r],G[r],sPerm)
        a.ds_write('ds_write_b32',vMWA if r==0 else ad[r],t[r])
        a.ds_write('ds_write_b16_d16_hi',bd[r],G[8+r])
def stage_B(a, G0, G1):
    for r in range(4): a.valu('v_perm_b32',G0[r],G1[r],G0[r],sPerm)
    for r in range(4):
        if r: a.valu('v_xor_b32',G1[r],16*r,vMWA)
        a.ds_write('ds_write_b32',vMWA if r==0 else G1[r],G0[r],12*512)
def stage_addr(a):
    ad=P(28,4); bd=P(32,4); x=P(36); y=P(37)
    a.valu('v_subrev_u32',x,LMEM,vMWA)
    a.valu('v_and_b32',bd[0],0x1f0,x); a.valu('v_bfe_u32',y,x,2,2); a.valu('v_lshl_add_u32',bd[0],y,1,bd[0])
    a.valu('v_bfe_u32',y,x,9,1); a.valu('v_lshl_add_u32',bd[0],y,3,bd[0])
    a.valu('v_lshrrev_b32',y,10,x); a.valu('v_lshl_add_u32',bd[0],y,9,bd[0]); a.valu('v_add_u32',bd[0],LMEM+8*512,bd[0])
    for r in range(1,4):
        a.valu('v_xor_b32',ad[r],16*r,vMWA); a.valu('v_xor_b32',bd[r],16*r,bd[0])

def stream_load(a,tile,dst):
    if 'nostream' in EXP: return
    idx=tile_loc[tile][1]
    if 'mod' in EXP: idx=idx%int(EXP.split('mod')[1].split('_')[0])
    for hf in range(2):
        a.bload('buffer_load_dwordx4',dst[4*hf:4*hf+4],vL16,sWS,sSWb[idx//2],off=(idx%2)*2048+hf*1024)
def lds_load(a,tile,dst):
    idx=tile_loc[tile][1]
    for hf in range(2): a.ds_read('ds_read_b128',dst[4*hf:4*hf+4],vWT,idx*2048+hf*1024)

def merge_pair(a,D0,D1,out):
    for r in range(4): a.valu('v_permlane32_swap_b32',D0[r],D1[r])
    for r in range(0,4,2): a.valu('v_pk_add_f32',out[r:r+2],D0[r:r+2],D1[r:r+2])
def zero(a,R_):
    for k in range(0,R_.n,2): a.valu('v_mov_b64',R_[k:k+2],0)
def xlane(a,op,x,tmp):
    a.valu('v_mov_b32',tmp,x); a.valu('v_permlane32_swap_b32',x,tmp); a.valu(op,x,x,tmp)
    a.valu('v_mov_b32',tmp,x); a.valu('v_permlane16_swap_b32',x,tmp); a.valu(op,x,x,tmp)

XS=[P(44+8*i,8) for i in range(5)]
def batch1(a):
    for n_ in range(4): stream_load(a,STREAM[n_],XS[n_])
def dma2(a):
    dma_part(a,sKXo,LKX,sDM[0]); dma_part(a,sVXo,LVX,sDM[0])

def chain_loop(a, st, tagname, D1=0, D2=0, fs=lambda a,k:None, post_pub=None, pre_dma=None, prog=None):
    lb=lambda n:f"L_{tagname}_{n}"
    acc={'q':P(0,4),'k':P(4,4),'v':P(8,4)}
    Ar=[P(12+4*i,4) for i in range(4)]; LL=[P(28,8),P(36,8)]; X=XS
    KXo=LKX-LMEM; VXo=LVX-LMEM
    def trfrag(D,base,k4):
        for hh in range(2): a.ds_read('ds_read_b64_tr_b16',D[2*hh:2*hh+2],vQEr,base+512*k4+256*hh)
    a.label(lb('top'))
    zero(a,P(0,12))
    a.wait(lgkm=0); a.barrier()
    fs(a,0)
    for k in range(4): a.ds_read('ds_read_b128',Ar[k],vMEMr,k*512)
    lds_load(a,('q',1,0),LL[0]); lds_load(a,('q',1,1),LL[1])
    nb2=[0]
    def tile_op(m,ka):
        t=(m,ka//2,ka%2); loc=tile_loc[t]
        if loc[0]=='reg': B=loc[1]
        elif loc[0]=='lds': B=LL[ka%2]
        else:
            n_=loc[1]; B=X[n_] if n_<4 else X[n_-4]
        a.smfmac(acc[m],Ar[ka%4],B,vIdx)
        if loc[0]=='lds' and ka+4<20: lds_load(a,('q',(ka+4)//2,ka%2),LL[ka%2])
        if loc[0]=='str' and loc[1]<4: stream_load(a,STREAM[loc[1]+4],X[loc[1]]); nb2[0]+=1
    GB=[P(76,4),P(80,4)]
    for ka in range(20):
        tile_op('q',ka); tile_op('k',ka)
        if ka==6:
            a.wait(vm=4+2*nb2[0]+(1 if post_pub else 0))
            a.valu('v_or_b32',vT,GB[0][0],GB[1][0]); a.valu('v_and_b32',vT,sMask,vT); a.valu('v_cmp_ne_u32','vcc',0,vT)
            a.branch('s_cbranch_vccnz',lb('agb'))
            a.raw(lb('agbok')+':',kind='plabel')
            stage_B(a,GB[0],GB[1])
        if ka<16:
            tile_op('v',ka)
            if ka==7:
                a.wait(lgkm=0); a.barrier()
                stream_load(a,STREAM[8],X[4])
            a.ds_read('ds_read_b128',Ar[ka%4],vMEMr,(ka+4)*512)
        if ka in (0,9,19): fs(a,{0:1,9:2,19:3}[ka])
    KFx={(T,k4):P(28+4*(2*k4+T-1),4) for k4 in range(4) for T in (1,2)}
    def kfx(T,k4): a.ds_read('ds_read_b128',KFx[(T,k4)],vFR,KXo+((T-1)*4+k4)*1024)
    pubq=P(60,4)
    a.valu('v_and_b32',vT,0x1f0,vL16); a.valu('v_and_b32',pubq[0],0x200,vL16); a.valu('v_lshl_add_u32',vT,pubq[0],2,vT)
    a.valu('v_add_u32',pubq[0],sPubL,vT)
    a.ds_read('ds_read_b128',pubq,pubq[0])
    tile_op('v',16)
    a.barrier()
    kfx(1,0); kfx(2,0)
    for m,off in (('q',0),('k',2048)):
        q_=acc[m]
        a.valu('v_cvt_pk_bf16_f32',q_[0],q_[0],q_[1]); a.valu('v_cvt_pk_bf16_f32',q_[1],q_[2],q_[3])
    a.bstore('buffer_store_dwordx4',pubq,vT,sWS,sKMVo,mods='sc1')
    a.ds_write('ds_write_b64',vQEw,acc['q'][0:2],0); a.ds_write('ds_write_b64',vQEw,acc['k'][0:2],2048)
    a.salu('s_add_u32',sKMVo,sKMVo,32*4096)
    kfx(1,1); kfx(2,1); kfx(1,2); kfx(2,2)
    fs(a,4)
    a.wait(lgkm=4); a.barrier()
    fs(a,5)
    QF=[P(0,4),P(4,4),P(60,4),P(64,4)]
    KF0=[Ar[k] for k in range(4)]
    Sacc=[KFx[(1,0)],P(68,4),P(72,4)]
    trfrag(QF[0],0,0); trfrag(QF[1],0,1); trfrag(KF0[0],2048,0)
    tile_op('v',17)
    trfrag(QF[2],0,2); trfrag(KF0[1],2048,1); kfx(1,3); kfx(2,3)
    tile_op('v',18)
    trfrag(QF[3],0,3); trfrag(KF0[2],2048,2)
    tile_op('v',19)
    trfrag(KF0[3],2048,3)
    fs(a,6)
    order=[(T,k4) for k4 in range(4) for T in (1,2)]
    VXF=[KFx[o] for o in order[1:]]+[P(76,4)]
    a.ds_read('ds_read_b128',VXF[7],vFR,VXo+7*1024)
    nvx=0
    v_=acc['v']
    for (T,k4) in order:
        a.mfma('v_mfma_f32_16x16x32_bf16',Sacc[T],KFx[(T,k4)],QF[k4],Sacc[T] if k4 else '0')
        if (T,k4)==(1,0):
            for k in range(4): a.valu('v_mov_b32',Sacc[0][k],vNEG)
        else:
            a.ds_read('ds_read_b128',VXF[nvx],vFR,VXo+nvx*1024)
            nvx+=1
        if (T,k4)==(1,1):
            a.valu('v_cvt_pk_bf16_f32',v_[0],v_[0],v_[1]); a.valu('v_cvt_pk_bf16_f32',v_[1],v_[2],v_[3])
            a.ds_write('ds_write_b64',vQEw,v_[0:2],4096)
    for k4 in range(4): a.mfma('v_mfma_f32_16x16x32_bf16',Sacc[0],KF0[k4],QF[k4],Sacc[0])
    fs(a,7)
    X3=[P(12,8),P(20,8),P(60,8)]
    OS=STREAM[9:]
    Px=P(8,4); Pm=P(80,2); mx=P(80); tm=P(81)
    s_=[Sacc[T][r] for T in range(3) for r in range(4)]
    a.valu('v_max3_f32',mx,s_[4],s_[5],s_[6]); a.valu('v_max3_f32',tm,s_[7],s_[8],s_[9])
    a.valu('v_max3_f32',mx,mx,s_[10],s_[11])
    a.wait(lgkm=0); a.barrier()
    a.salu('s_cmp_eq_u32',sStep,63,ndst=0); a.branch('s_cbranch_scc1',lb('last'))
    VE=[P(0,2),P(2,2),P(4,2),P(6,2),VXF[0][0:2],VXF[0][2:4],VXF[1][0:2],VXF[1][2:4]]
    for et in range(4): a.ds_read('ds_read_b64',VE[et],vVEr,et*256)
    a.valu('v_max3_f32',tm,tm,s_[0],s_[1])
    a.valu('v_max3_f32',mx,mx,s_[2],s_[3]); a.valu('v_max_f32',mx,mx,tm)
    a.valu('v_mov_b32',tm,mx); stream_load(a,OS[0],X3[0]); a.valu('v_permlane32_swap_b32',mx,tm); a.valu('v_max_f32',mx,mx,tm)
    a.valu('v_mov_b32',tm,mx); stream_load(a,OS[1],X3[1]); a.valu('v_permlane16_swap_b32',mx,tm); a.valu('v_max_f32',mx,mx,tm)
    a.valu('v_mul_f32',mx,sC[0],mx)
    for T in range(3):
        for h2 in range(2): a.valu('v_pk_fma_f32',Sacc[T][2*h2:2*h2+2],Sacc[T][2*h2:2*h2+2],sC,P(80,2),mods='op_sel_hi:[1,1,0] neg_lo:[0,0,1] neg_hi:[0,0,1]')
    for x in s_: a.valu('v_exp_f32',x,x)
    sm=Px[0:2]; rs=Px[2:4]
    a.valu('v_pk_add_f32',sm,Sacc[0][0:2],Sacc[0][2:4])
    for T in (1,2):
        a.valu('v_pk_add_f32',sm,sm,Sacc[T][0:2]); a.valu('v_pk_add_f32',sm,sm,Sacc[T][2:4])
    a.valu('v_add_f32',sm[0],sm[0],sm[1])
    a.valu('v_mov_b32',tm,sm[0]); stream_load(a,OS[2],X3[2]); a.valu('v_permlane32_swap_b32',sm[0],tm); a.valu('v_add_f32',sm[0],sm[0],tm)
    a.valu('v_mov_b32',tm,sm[0]); a.valu('v_permlane16_swap_b32',sm[0],tm); a.valu('v_add_f32',sm[0],sm[0],tm)
    a.valu('v_rcp_f32',rs[0],sm[0])
    for T in (1,2,0):
        for h2 in range(2): a.valu('v_pk_mul_f32',Sacc[T][2*h2:2*h2+2],Sacc[T][2*h2:2*h2+2],rs,mods='op_sel_hi:[1,0]')
    for T,o in ((1,0),(2,2)):
        for h2 in range(2): a.valu('v_cvt_pk_bf16_f32',Px[o+h2],Sacc[T][2*h2],Sacc[T][2*h2+1])
    for h2 in range(2): a.valu('v_cvt_pk_bf16_f32',Pm[h2],Sacc[0][2*h2],Sacc[0][2*h2+1])
    fs(a,8)
    O=[Sacc[1],Sacc[2],Sacc[0]]+[VXF[k] for k in range(2,7)]
    for et in range(8):
        a.mfma('v_mfma_f32_16x16x32_bf16',O[et],VXF[et],Px,'0')
        if et<2:
            a.ds_read('ds_read_b64',VE[4+2*et],vVEr,(4+2*et)*256); a.ds_read('ds_read_b64',VE[5+2*et],vVEr,(5+2*et)*256)
    fs(a,9)
    def cvt(et):
        d=O[et&~1]; o=2*(et&1)
        a.valu('v_cvt_pk_bf16_f32',d[o],O[et][0],O[et][1]); a.valu('v_cvt_pk_bf16_f32',d[o+1],O[et][2],O[et][3])
    A2=[O[0],O[2],O[4],O[6]]
    oacc=[Px,O[1],O[3],O[5],O[7]]
    LO=[P(0,8),R('v',VXF[0].i,8)]
    for et in range(8):
        a.mfma('v_mfma_f32_16x16x16_bf16',O[et],VE[et],Pm,O[et])
        if et==0: zero(a,Px)
        if et>=3: cvt(et-3)
        if et==4: lds_load(a,('o',1,0,0),LO[0])
    lds_load(a,('o',1,0,1),LO[1])
    fs(a,10)
    def fin(i):
        c=oacc[i]
        a.valu('v_cvt_pk_bf16_f32',c[0],c[0],c[1]); a.valu('v_cvt_pk_bf16_f32',c[1],c[2],c[3])
        a.valu('v_bfi_b32',c[0],sBM,vNEG,c[0])
        a.bstore('buffer_store_dwordx2',c[0:2],vPst,sWS,sPst[i],mods=st)
    for i in range(5):
        for k2 in range(2):
            for c2 in range(2):
                t=('o',i,k2,c2); loc=tile_loc[t]
                B=loc[1] if loc[0]=='reg' else (LO[c2] if loc[0]=='lds' else X3[OS.index(t)])
                a.smfmac(oacc[i],A2[2*k2+c2],B,vIdx)
                if loc[0]=='lds' and i+1<=3: lds_load(a,('o',i+1,0,c2),LO[c2])
                n_=2*k2+c2
                if i==0:
                    if n_==0: cvt(5)
                    if n_==1: cvt(6); cvt(7)
                    if n_==2: zero(a,O[1])
                    if n_==3: zero(a,O[3])
                if i==1 and n_==0: zero(a,O[5])
                if i==1 and n_==1: zero(a,O[7])
                if i>=1 and n_==2: fin(i-1)
    fin(4)
    fs(a,11)
    a.salu('s_add_u32',sStep,sStep,1)
    a.salu('s_add_u32',sKXo,sKXo,32*8192); a.salu('s_add_u32',sVXo,sVXo,32*8192)
    a.valu('v_xor_b32',vNEG,sBM,vNEG)
    a.salu('s_cmp_ge_u32',sUnit,80,ndst=0); a.branch('s_cbranch_scc1',lb('ag0'))
    if 'b1late' not in EXP: batch1(a)
    Sel=P(20,4); m_=P(24); one=P(25)
    mk_mst(a)
    a.valu('v_lshrrev_b32',m_,4,vL16); a.valu('v_and_b32',m_,15,m_)
    a.valu('v_and_b32',one,1,m_); a.valu('v_lshlrev_b32',one,4,one)
    a.valu('v_mov_b32',P(26),'0x3f80'); a.valu('v_lshlrev_b32',one,one,P(26))
    a.valu('v_lshrrev_b32',m_,1,m_)
    for k in range(4):
        a.valu('v_cmp_eq_u32','vcc',k,m_); a.valu('v_cndmask_b32',Sel[k],0,one,'vcc')
    if D1: a.raw(f"s_sleep {D1}")
    G=[P(4*i,4) for i in range(4)]
    a.label(lb('rs'))
    guard(a)
    if 'cnt' in EXP: a.salu('s_add_u32',S(4),S(4),1)
    for i in range(4): a.bload('buffer_load_dwordx4',G[i],vL16,sWS,sRSoff,off=1024*i,mods='sc1')
    x=P(38); D=P(16,4)
    a.valu('v_or3_b32',x,G[0][0],G[0][2],G[1][0]); a.valu('v_or3_b32',x,x,G[1][2],G[2][0])
    a.valu('v_or3_b32',x,x,G[2][2],G[3][0]); a.valu('v_or_b32',x,x,G[3][2])
    a.valu('v_and_b32',x,sMaskP,x); a.valu('v_cmp_ne_u32','vcc',0,x)
    for i in range(4): a.mfma('v_mfma_f32_16x16x32_bf16',D,Sel,G[i],D if i else '0')
    a.branch('s_cbranch_vccnz',lb('rs'))
    for k in range(4): a.valu('v_add_f32',D[k],D[k],D[k],mods='row_ror:8 row_mask:0xf bank_mask:0xf')
    for k in range(4): a.valu('v_cvt_pk_bf16_f32',D[k],0,D[k])
    a.valu('v_or_b32',D[0],sMask,D[0])
    a.salu('s_mov_b64','exec','0x00ff00ff')
    a.bstore('buffer_store_dwordx4',D,vMst,sWS,sMSToff,mods=st)
    a.salu('s_mov_b64','exec',-1)
    fs(a,12)
    a.salu('s_mov_b32',sT0,sTag); a.salu('s_mov_b32',sTag,sMask); a.salu('s_mov_b32',sMask,sT0)
    a.salu('s_xor_b32',sMaskP,sMaskP,sBM)
    stage_addr(a)
    if 'b1late' in EXP: batch1(a)
    if D2: a.raw(f"s_sleep {D2}")
    a.branch('s_branch',lb('ag'))
    a.label(lb('ag0'))
    a.salu('s_mov_b32',sT0,sTag); a.salu('s_mov_b32',sTag,sMask); a.salu('s_mov_b32',sMask,sT0)
    a.salu('s_xor_b32',sMaskP,sMaskP,sBM)
    stage_addr(a)
    if prog: prog(a)
    if D1: a.raw(f"s_sleep {D1+6}")
    batch1(a)
    if D2: a.raw(f"s_sleep {D2}")
    a.label(lb('ag'))
    guard(a)
    if 'cnt' in EXP: a.salu('s_add_u32',S(5),S(5),1)
    G=P(0,12)
    for i in range(3): a.bload('buffer_load_dwordx4',G[4*i:4*i+4],vL16,sWS,sAG[i],mods='sc1')
    x=P(40)
    a.valu('v_or3_b32',x,G[0],G[4],G[8])
    a.valu('v_and_b32',x,sMask,x); a.valu('v_cmp_ne_u32','vcc',0,x)
    a.branch('s_cbranch_vccnz',lb('ag'))
    fs(a,13)
    for i in range(2): a.bload('buffer_load_dwordx4',GB[i],vL16,sWS,sAG[3+i],mods='sc1')
    stage_A(a,G)
    dma2(a)
    if post_pub: post_pub(a)
    a.branch('s_branch',lb('top'))
    a.label(lb('agb'))
    guard(a)
    for i in range(2): a.bload('buffer_load_dwordx4',GB[i],vL16,sWS,sAG[3+i],mods='sc1')
    a.wait(vm=0)
    a.valu('v_or_b32',vT,GB[0][0],GB[1][0]); a.valu('v_and_b32',vT,sMask,vT); a.valu('v_cmp_ne_u32','vcc',0,vT)
    a.branch('s_cbranch_vccnz',lb('agb'))
    a.nop(4)
    a.branch('s_branch',lb('agbok'))
    a.label(lb('last'))
    publish(a,P(76,4))
    a.label(lb('exit'))

def chain_first(a,pre_dma=None):
    G=P(0,12); GB=[P(76,4),P(80,4)]; u=P(64); rh=P(65); off=P(66)
    a.valu('v_lshrrev_b32',u,1,vT); a.valu('v_and_b32',rh,1,vT)
    a.salu('s_movk_i32',sT0,4*1280); a.valu('v_mul_lo_u32',off,rh,sT0); a.valu('v_lshl_add_u32',off,u,1,off)
    regs=[G[k] for k in range(12)]+[GB[0][k] for k in range(4)]+[GB[1][k] for k in range(4)]
    for r_ in regs: a.valu('v_mov_b32',r_,0)
    for r in range(4):
        a.salu('s_movk_i32',sT1,r*1280)
        for i in range(5):
            a.bload('buffer_load_short_d16_hi',regs[4*i+r],off,sM0,sT1,off=i*256).rd |= set(regs[4*i+r].regs())
    batch1(a)
    a.wait(vm=0)
    stage_addr(a)
    stage_A(a,G)
    dma2(a)
    if pre_dma: pre_dma(a)
```

```python
from chain import *
def FLG(i): return FL+128*i
O_CHT=FLG(0); O_CHBAR=FLG(1); O_TASK=FLG(2); O_PROG=FLG(3)
O_Q=FLG(96)
O_RB=FLG(8)
O_AT=FLG(32)
NFLG=128
F_LN=0; F_KV=5; F_Q=11; F_H=17
sTask=S(60); sWv_=S(61); sA=S(62); sB=S(63); sCn=S(64); sD=S(65); sE=S(66); sF=S(67)
sWo_=S(68); sAo=S(69); sK=S(70); sOut=S(71); sRB=S(72); sG=S(73); sLB=S(74); sRow=S(75); sI=S(76); sJ=S(77)
sWo2=S(78); sAst=S(79)
pL16=V(1); pW0=V(2); pW1=V(3); pTR=[V(4+i) for i in range(8)]; pT=[V(12+i) for i in range(12)]
pLane=V(24); pG=V(25); pN=V(26)
WFb=28
AFb=92
def WF(b,ct): return V(WFb+32*b+4*ct,4)
def AF(b,tt): return V(AFb+32*b+4*tt,4)
def ACC(ct,tt,NT): return A(4*(ct*NT+tt),4)

def par_setup(a):
    a.valu('v_and_b32',pLane,63,vT)
    a.valu('v_lshrrev_b32',pT[0],6,vT); a.valu('v_readfirstlane_b32',sWv_,pT[0])
    a.valu('v_lshlrev_b32',pL16,4,pLane)
    a.valu('v_lshrrev_b32',pG,4,pLane); a.valu('v_and_b32',pN,15,pLane)
    a.salu('s_lshl_b32',sLB,sWv_,15)
    a.valu('v_lshrrev_b32',pT[0],2,pLane); a.valu('v_and_b32',pT[1],7,pT[0]); a.valu('v_and_b32',pT[2],3,pLane)
    a.valu('v_lshlrev_b32',pT[0],8,pT[0]); a.valu('v_lshl_add_u32',pT[0],pT[1],5,pT[0]); a.valu('v_lshl_add_u32',pT[0],pT[2],3,pT[0])
    for ct in range(8):
        a.valu('v_xor_b32',pT[1],32*ct,pT[0]); a.valu('v_add_u32',pTR[ct],sLB,pT[1])

def set_wstride(a,rs):
    a.salu('s_mov_b32',sA,rs)
    a.valu('v_mul_lo_u32',pT[0],pG,sA)
    for j,dst in ((0,pW0),(1,pW1)):
        a.valu('v_lshlrev_b32',pT[1],1,pG);
        if j: a.valu('v_add_u32',pT[1],8,pT[1])
        a.valu('v_xor_b32',pT[1],pT[1],pN); a.valu('v_lshl_add_u32',dst,pT[1],4,pT[0])

def gemm_core(a,name,NT,srdW,rs,nk,formT=True,act_stride=None,zero_acc=True,NCT=8,hook=None):
    if zero_acc:
        for r in range(0,4*NCT*NT): a.valu('v_accvgpr_write_b32',A(r),0)
    def dma(slot):
        for j in range(NCT):
            a.salu('s_add_u32','m0',sLB,slot*8192+j*1024)
            a.salu('s_add_u32',sA,sWo_,(32//NCT)*j*rs)
            a.bload_lds('buffer_load_dwordx4',pW1 if (j&1 and NCT==8) else pW0,srdW,sA)
        a.salu('s_add_u32',sWo_,sWo_,32*rs)
    def act(b):
        a.salu('s_mov_b32',sB,sAo)
        for tt in range(NT):
            a.bload('buffer_load_dwordx4',AF(b,tt),pL16,sWS,sB,mods='sc1')
            if tt+1<NT: a.salu('s_add_u32',sB,sB,sAst)
        a.salu('s_add_u32',sAo,sAo,1024)
    def trs(b,slot):
        for ct in range(NCT):
            for hh in range(2): a.ds_read('ds_read_b64_tr_b16',WF(b,ct)[2*hh:2*hh+2],pTR[ct],slot*8192+hh*512*NCT)
    if hook:
        dma(0); dma(1); dma(2); hook(); act(0); act(1)
        a.wait(vm=2*NT); trs(0,0); a.wait(vm=NT)
    else:
        dma(0); act(0); dma(1); act(1); dma(2)
        a.wait(vm=2*NT+2*NCT); trs(0,0)
    a.salu('s_mov_b32',sK,0)
    a.label(f'L_{name}_loop')
    for u in range(4):
        a.wait(vm=8+ (NT if False else 0) + 0 if False else 8+NT-NT+0, lgkm=0) if False else None
        a.wait(vm=NT+NCT,lgkm=0)
        def mm():
            for ct in range(NCT):
                for tt in range(NT):
                    if formT: a.mfma('v_mfma_f32_16x16x32_bf16',ACC(ct,tt,NT),WF(u%2,ct),AF(u,tt),ACC(ct,tt,NT))
                    else: a.mfma('v_mfma_f32_16x16x32_bf16',ACC(ct,tt,NT),AF(u,tt),WF(u%2,ct),ACC(ct,tt,NT))
        def side():
            trs((u+1)%2,(u+1)%4); act((u+2)%4); dma((u+3)%4)
        m_=a.capture(mm); s_=a.capture(side)
        a.put(weave(m_,s_,per=max(1,-(-len(s_)//max(1,len(m_)-2)))))
    a.salu('s_add_u32',sK,sK,4); a.salu('s_cmp_lt_u32',sK,nk,ndst=0); a.branch('s_cbranch_scc1',f'L_{name}_loop')
    a.wait(vm=0,lgkm=0)
    a.nop(7); a.nop(7)

def gemm_deep(a,srdW,rs,NK,hook):
    for r in range(32): a.valu('v_accvgpr_write_b32',A(r),0)
    def dma(ks):
        for j in range(4):
            a.salu('s_add_u32','m0',sLB,(ks%8)*4096+j*1024)
            a.salu('s_add_u32',sA,sWo_,(32*ks+8*j)*rs)
            i=a.bload_lds('buffer_load_dwordx4',pW0,srdW,sA); i.kind='vmload'; i.wr={f'L{ks%8}_{j}'}
    def af(ks,tt): return V(AFb+8*(ks%16)+4*tt,4)
    def act(ks):
        for tt in range(2):
            a.salu('s_add_u32',sB,sAo,1024*ks+131072*tt)
            a.bload('buffer_load_dwordx4',af(ks,tt),pL16,sWS,sB,mods='sc1')
    def trs(ks):
        for ct in range(4):
            for hh in range(2):
                i=a.ds_read('ds_read_b64_tr_b16',WF(ks%2,ct)[2*hh:2*hh+2],pTR[ct],(ks%8)*4096+hh*2048); i.rd|={f'L{ks%8}_{j}' for j in range(4)}
    for ks in range(7): dma(ks)
    a.wait(vm=0)
    hook()
    for ks in range(12): act(ks)
    trs(0)
    for ks in range(NK):
        if ks+1<NK: trs(ks+1)
        for ct in range(4):
            for tt in range(2): a.mfma('v_mfma_f32_16x16x32_bf16',ACC(ct,tt,2),WF(ks%2,ct),af(ks,tt),ACC(ct,tt,2))
        if ks+12<NK: act(ks+12)
        if ks+7<NK: dma(ks+7)
    a.wait(vm=0,lgkm=0); a.nop(7); a.nop(7)

def rd_acc(a,dst,q):
    for r in range(4): a.valu('v_accvgpr_read_b32',dst[r],q[r])

uid=[0]
def signal(a,dw,val):
    uid[0]+=1; l=f'L_sig{uid[0]}'
    a.wait(vm=0); a.barrier()
    a.salu('s_cmp_lg_u32',sWv_,0,ndst=0); a.branch('s_cbranch_scc1',l)
    a.valu('v_mov_b32',pT[0],val); a.valu('v_mov_b32',pT[1],0)
    a.salu('s_mov_b64','exec',1)
    a.batomic('buffer_atomic_add',pT[0],pT[1],sWS,dw,mods='sc1')
    a.salu('s_mov_b64','exec',-1)
    a.label(l)
def wait_field(a,dw,shift_s,mask,need,slp=16):
    uid[0]+=1; l=f'L_wf{uid[0]}'; l2=l+'d'
    a.salu('s_cmp_lg_u32',sWv_,0,ndst=0); a.branch('s_cbranch_scc1',l2)
    a.valu('v_mov_b32',pT[1],0)
    a.label(l)
    guard(a)
    a.bload('buffer_load_dword',pT[0],pT[1],sWS,dw,mods='sc1')
    a.valu('v_lshrrev_b32',pT[0],shift_s,pT[0]); a.valu('v_and_b32',pT[0],mask,pT[0])
    a.valu('v_cmp_le_u32','vcc',need,pT[0])
    a.branch('s_cbranch_vccnz',l2)
    a.raw(f's_sleep {slp}')
    a.branch('s_branch',l)
    a.label(l2)
    a.barrier()

def bf16r(a,dst_pk,x0,x1): a.valu('v_cvt_pk_bf16_f32',dst_pk,x0,x1)
def unpk(a,lo,hi,pk):
    a.valu('v_lshlrev_b32',lo,16,pk); a.valu('v_and_b32',hi,'0xffff0000',pk)

def task_ln(a):
    X_=[[V(28+16*rr+k) for k in range(12)] for rr in range(2)]; RAW=[V(60,6),V(66,6)]
    s1=V(72); t=V(73); mean=V(74); o=V(76,2); vo=V(78); so=[V(79),V(80),V(81)]; mb=V(82); rstd=V(83)
    a.valu('v_lshlrev_b32',vo,3,pLane)
    a.valu('v_cmp_gt_u32',S(90,2),32,pLane)
    a.salu('s_lshl_b32',sA,sI,3); a.salu('s_lshl_b32',sB,sWv_,1); a.salu('s_add_u32',sRow,sA,sB)
    a.salu('s_mul_i32',sA,sRow,1280)
    for rr in range(2):
        raw=RAW[rr]
        a.valu('v_mov_b64',raw[4:6],0)
        a.bload('buffer_load_dwordx2',raw[0:2],vo,sX,sA,off=1280*rr); a.bload('buffer_load_dwordx2',raw[2:4],vo,sX,sA,off=1280*rr+512)
    a.salu('s_mov_b64','exec',S(90,2))
    for rr in range(2): a.bload('buffer_load_dwordx2',RAW[rr][4:6],vo,sX,sA,off=1280*rr+1024).rd|=set(RAW[rr][4:6].regs())
    a.salu('s_mov_b64','exec',-1)
    for i in range(3):
        a.valu('v_add_u32',t,64*i,pLane)
        a.valu('v_lshrrev_b32',so[i],3,t); a.valu('v_lshlrev_b32',so[i],10,so[i])
        a.valu('v_and_b32',s1,3,t); a.valu('v_lshl_add_u32',so[i],s1,8,so[i])
        a.valu('v_bfe_u32',s1,t,2,1); a.valu('v_lshl_add_u32',so[i],s1,3,so[i])
    a.salu('s_lshr_b32',sA,sRow,4); a.salu('s_mul_i32',sA,sA,20480); a.salu('s_and_b32',sB,sRow,15); a.salu('s_lshl_b32',sB,sB,4); a.salu('s_add_u32',sA,sA,sB); a.salu('s_add_u32',sOut,sA,XN)
    def wsum(dst):
        for sh in (8,4,2,1): a.valu('v_add_f32',dst,dst,dst,mods=f'row_ror:{sh} row_mask:0xf bank_mask:0xf')
        xlane(a,'v_add_f32',dst,t)
    for rr in range(2):
        x=X_[rr]; raw=RAW[rr]
        for k in range(6): unpk(a,x[2*k],x[2*k+1],raw[k])
        a.valu('v_add_f32',s1,x[0],x[1])
        for k in range(2,12): a.valu('v_add_f32',s1,s1,x[k])
        wsum(s1)
        a.valu('v_mul_f32',mean,'0x3acccccd',s1)
        a.valu('v_sub_f32',t,x[0],mean); a.valu('v_mul_f32',s1,t,t)
        for k in range(1,8): a.valu('v_sub_f32',t,x[k],mean); a.valu('v_fmac_f32',s1,t,t,rmw=True)
        a.valu('v_mov_b32',rstd,0)
        for k in range(8,12): a.valu('v_sub_f32',t,x[k],mean); a.valu('v_fmac_f32',rstd,t,t,rmw=True)
        a.valu('v_cndmask_b32',rstd,0,rstd,S(90,2)); a.valu('v_add_f32',s1,s1,rstd)
        wsum(s1)
        a.valu('v_mul_f32',s1,'0x3acccccd',s1)
        bf16r(a,t,mean,s1); unpk(a,mb,s1,t)
        a.valu('v_add_f32',s1,'0x3727c5ac',s1); bf16r(a,t,s1,s1); a.valu('v_lshlrev_b32',s1,16,t)
        a.valu('v_sqrt_f32',s1,s1); bf16r(a,t,s1,s1); a.valu('v_lshlrev_b32',s1,16,t)
        a.valu('v_rcp_f32',rstd,s1)
        for i in range(3):
            for k in range(4): a.valu('v_sub_f32',x[4*i+k],x[4*i+k],mb)
            for k in range(0,4,2):
                bf16r(a,t,x[4*i+k],x[4*i+k+1]); unpk(a,x[4*i+k],x[4*i+k+1],t)
            for k in range(4):
                xx=x[4*i+k]
                a.valu('v_mul_f32',mean,xx,rstd); a.valu('v_fma_f32',xx,'-'+str(mean),s1,xx); a.valu('v_fma_f32',xx,xx,rstd,mean)
            bf16r(a,o[0],x[4*i],x[4*i+1]); bf16r(a,o[1],x[4*i+2],x[4*i+3])
            if i==2: a.salu('s_mov_b64','exec',S(90,2))
            a.bstore('buffer_store_dwordx2',o,so[i],sWS,sOut,off=16*rr,mods='sc1')
            if i==2: a.salu('s_mov_b64','exec',-1)

def rb_off(a,dst): a.salu('s_lshl_b32',dst,sRB,7); a.salu('s_add_u32',dst,dst,O_RB)

def epi_T(a,NT,store):
    q=[V(28,4),V(32,4)]; o=[V(36,4),V(40,4)]; n=0
    for tt in range(NT):
        for k4 in range(4):
            oo=o[n%2]; n+=1
            for h in range(2):
                rd_acc(a,q[h],ACC(2*k4+h,tt,NT))
                bf16r(a,oo[2*h],q[h][0],q[h][1]); bf16r(a,oo[2*h+1],q[h][2],q[h][3])
            store(tt,k4,oo)

def task_kq(a,name,srd,dest,field):
    set_wstride(a,8192)
    rb_off(a,sD); wait_field(a,sD,F_LN,31,16,slp=2)
    a.salu('s_lshl_b32',sWo_,sJ,8)
    a.salu('s_mul_i32',sAo,sRB,8*20480); a.salu('s_add_u32',sAo,sAo,XN); a.salu('s_mov_b32',sAst,20480); a.salu('s_mov_b32',sCn,20)
    gemm_core(a,name,8,srd,8192,sCn,True)
    a.salu('s_lshl_b32',sOut,sRB,7); a.salu('s_add_u32',sOut,sOut,sJ); a.salu('s_lshl_b32',sOut,sOut,13); a.salu('s_add_u32',sOut,sOut,dest)
    def st(tt,k4,oo):
        a.salu('s_add_u32',sA,sOut,(tt//2)*32*8192+(tt%2)*4096)
        a.bstore('buffer_store_dwordx4',oo,pL16,sWS,sA,off=k4*1024,mods='sc1')
    epi_T(a,8,st)
    rb_off(a,sD); signal(a,sD,1<<field)
def task_v(a):
    set_wstride(a,8192)
    rb_off(a,sD); wait_field(a,sD,F_LN,31,16,slp=2)
    a.salu('s_lshl_b32',sWo_,sJ,8)
    a.salu('s_mul_i32',sAo,sRB,8*20480); a.salu('s_add_u32',sAo,sAo,XN); a.salu('s_mov_b32',sAst,20480); a.salu('s_mov_b32',sCn,20)
    gemm_core(a,'gv',8,sWv,8192,sCn,False)
    a.salu('s_lshl_b32',sOut,sRB,7); a.salu('s_add_u32',sOut,sOut,sJ); a.salu('s_lshl_b32',sOut,sOut,13); a.salu('s_add_u32',sOut,sOut,VX)
    q=[V(28,4),V(32,4)]; o=[V(36,4),V(40,4)]; n=0
    for sg in range(4):
        for et in range(8):
            oo=o[n%2]; n+=1
            for h in range(2):
                rd_acc(a,q[h],ACC(et,2*sg+h,8))
                bf16r(a,oo[2*h],q[h][0],q[h][1]); bf16r(a,oo[2*h+1],q[h][2],q[h][3])
            a.salu('s_add_u32',sA,sOut,sg*32*8192+(et//4)*4096)
            a.bstore('buffer_store_dwordx4',oo,pL16,sWS,sA,off=(et%4)*1024,mods='sc1')
    rb_off(a,sD); signal(a,sD,1<<F_KV)

HKS=56
def task_f1(a):
    uid[0]+=1; l=f'L_f1skip{uid[0]}'
    set_wstride(a,3456)
    rb_off(a,sD); wait_field(a,sD,F_LN,31,16,slp=2)
    a.salu('s_cmp_ge_u32',sJ,14,ndst=0); a.branch('s_cbranch_scc1',l)
    a.salu('s_lshl_b32',sWo_,sJ,8)
    a.salu('s_mul_i32',sAo,sRB,8*20480); a.salu('s_add_u32',sAo,sAo,XN); a.salu('s_mov_b32',sAst,20480); a.salu('s_mov_b32',sCn,20)
    gemm_core(a,'gf',8,sW1,3456,sCn,True)
    bias=V(44,32); bb=V(76,16); ok=V(92)
    a.valu('v_lshlrev_b32',pT[2],3,pG); a.salu('s_lshl_b32',sA,sJ,8)
    for ct in range(8): a.bload('buffer_load_dwordx2',bb[2*ct:2*ct+2],pT[2],sB1,sA,off=32*ct)
    for ct in range(8):
        unpk(a,bias[4*ct],bias[4*ct+1],bb[2*ct]); unpk(a,bias[4*ct+2],bias[4*ct+3],bb[2*ct+1])
    a.salu('s_mul_i32',sOut,sRB,8*HKS*1024); a.salu('s_lshl_b32',sA,sJ,12); a.salu('s_add_u32',sOut,sOut,sA); a.salu('s_add_u32',sOut,sOut,HF)
    a.salu('s_cmp_eq_u32',sJ,13,ndst=0); a.salu('s_cselect_b32',sE,0,-1)
    q=[V(28,4),V(32,4)]; o=[V(36,4),V(40,4)]; n=0; t=V(93)
    for tt in range(8):
        for k4 in range(4):
            oo=o[n%2]; n+=1
            for h in range(2):
                qq=q[h]; rd_acc(a,qq,ACC(2*k4+h,tt,8))
                for p in range(2):
                    bf16r(a,t,qq[2*p],qq[2*p+1]); unpk(a,qq[2*p],qq[2*p+1],t)
                    a.valu('v_add_f32',qq[2*p],qq[2*p],bias[4*(2*k4+h)+2*p]); a.valu('v_add_f32',qq[2*p+1],qq[2*p+1],bias[4*(2*k4+h)+2*p+1])
                    bf16r(a,t,qq[2*p],qq[2*p+1]); unpk(a,qq[2*p],qq[2*p+1],t)
                    a.valu('v_max_f32',qq[2*p],0,qq[2*p]); a.valu('v_max_f32',qq[2*p+1],0,qq[2*p+1])
                    a.valu('v_mul_f32',qq[2*p],qq[2*p],qq[2*p]); a.valu('v_mul_f32',qq[2*p+1],qq[2*p+1],qq[2*p+1])
                    bf16r(a,oo[2*h+p],qq[2*p],qq[2*p+1])
                    if k4>=2: a.valu('v_and_b32',oo[2*h+p],sE,oo[2*h+p])
            a.salu('s_add_u32',sA,sOut,tt*HKS*1024)
            a.bstore('buffer_store_dwordx4',oo,pL16,sWS,sA,off=k4*1024,mods='sc1')
    a.label(l)
    rb_off(a,sD); signal(a,sD,1<<F_H)

def task_at(a):
    uid[0]+=1; l=f'L_atw{uid[0]}'
    a.salu('s_lshr_b32',sRB,sI,2); rb_off(a,sD)
    wait_field(a,sD,F_Q,63,8); wait_field(a,sD,F_KV,63,16)
    QF=[[V(28+4*(4*u+k),4) for k in range(4)] for u in range(2)]
    KF=[[V(60+4*(4*T+k),4) for k in range(4)] for T in range(2)]
    VF=[V(92+4*e,4) for e in range(8)]
    K0=[V(124+4*k,4) for k in range(4)]
    V0=[V(140+2*e,2) for e in range(8)]
    a.salu('s_lshl_b32',sA,sI,5); a.salu('s_add_u32',sA,sA,sJ); a.salu('s_lshl_b32',sB,sA,13)
    for base,regs in ((QX,QF[0]+QF[1]),(KX,KF[0]+KF[1]),(VX,VF)):
        a.salu('s_add_u32',sE,sB,base); a.salu('s_add_u32',sF,sB,base+4096)
        for k,r in enumerate(regs): a.bload('buffer_load_dwordx4',r,pL16,sWS,sE if k<4 else sF,off=(k%4)*1024,mods='sc1')
    a.valu('v_mov_b32',pT[2],0); a.salu('s_add_u32',sE,sI,1); a.salu('s_mov_b32',sF,O_PROG)
    a.salu('s_cmp_lg_u32',sWv_,0,ndst=0); a.branch('s_cbranch_scc1',l+'d')
    a.label(l)
    guard(a)
    a.bload('buffer_load_dwordx2',V(12,2),pT[2],sWS,sF,mods='sc1')
    a.valu('v_cmp_le_i32',S(90,2),sE,pT[0]); a.valu('v_cmp_le_u32','vcc',32,pT[1])
    a.salu('s_or_b64','vcc','vcc',S(90,2))
    a.branch('s_cbranch_vccnz',l+'d')
    a.raw('s_sleep 8')
    a.branch('s_branch',l)
    a.label(l+'d')
    a.barrier()
    a.salu('s_lshl_b32',sB,sA,12); a.salu('s_add_u32',sB,sB,KMV)
    for j in range(2):
        a.salu('s_add_u32','m0',sLB,0)
        a.bload_lds('buffer_load_dwordx4',pL16,sWS,sB,off=1024*j,mods='sc1')
    g2=pT[3]; va=pT[4]; ta=pT[5]
    a.valu('v_and_b32',g2,1,pG); a.valu('v_lshlrev_b32',va,4,pN); a.valu('v_lshl_add_u32',va,g2,3,va)
    for e in range(8): a.bload('buffer_load_dwordx2',V0[e],va,sWS,sB,off=2048+256*e,mods='sc1')
    a.valu('v_lshrrev_b32',ta,2,pLane); a.valu('v_lshlrev_b32',ta,4,ta); a.valu('v_and_b32',pT[6],1,pLane); a.valu('v_lshl_add_u32',ta,pT[6],3,ta)
    a.valu('v_add_u32',ta,sLB,ta)
    a.wait(vm=0)
    for k in range(4):
        for hh in range(2): a.ds_read('ds_read_b64_tr_b16',K0[k][2*hh:2*hh+2],ta,512*k+256*hh)
    cm=[S(80+2*r,2) for r in range(4)]; m0_=S(88,2)
    for r in range(4):
        a.valu('v_lshl_add_u32',pT[6],pG,2,r); a.valu('v_cmp_gt_u32',cm[r],pT[6],pN)
    a.valu('v_cmp_le_u32',m0_,2,pG)
    NEG=pT[7]; a.valu('v_mov_b32',NEG,'0xce6e6b28')
    Sq={}; base=156
    for u in range(2):
        for T in range(3):
            if (T,u)==(2,0): continue
            Sq[(T,u)]=V(base,4); base+=4
            for k in range(4):
                src=K0[k] if T==0 else KF[T-1][k]
                a.mfma('v_mfma_f32_16x16x32_bf16',Sq[(T,u)],src,QF[u][k],Sq[(T,u)] if k else '0')
    t=pT[8]; mx=pT[9]; sm=pT[10]; tm=pT[11]
    Pq={}
    a.salu('s_mov_b32',sE,'0x3db504f3'); a.salu('s_mov_b32',sF,'0x3fb8aa3b')
    for u in range(2):
        Ts=[T for T in range(3) if (T,u) in Sq]
        vals=[]
        for T in Ts:
            q=Sq[(T,u)]
            for p in range(2):
                bf16r(a,t,q[2*p],q[2*p+1]); unpk(a,q[2*p],q[2*p+1],t)
                a.valu('v_mul_f32',q[2*p],sE,q[2*p]); a.valu('v_mul_f32',q[2*p+1],sE,q[2*p+1])
                bf16r(a,t,q[2*p],q[2*p+1]); unpk(a,q[2*p],q[2*p+1],t)
            for r in range(4):
                if T==0: a.valu('v_cndmask_b32',q[r],q[r],NEG,m0_)
                elif T==u+1: a.valu('v_cndmask_b32',q[r],q[r],NEG,cm[r])
                vals.append(q[r])
        a.valu('v_max_f32',mx,vals[0],vals[1])
        for k in range(2,len(vals),2): a.valu('v_max3_f32',mx,mx,vals[k],vals[k+1])
        xlane(a,'v_max_f32',mx,tm)
        for x in vals:
            a.valu('v_sub_f32',x,x,mx); a.valu('v_mul_f32',x,sF,x); a.valu('v_exp_f32',x,x)
        for r in range(4): a.valu('v_cndmask_b32',Sq[(0,u)][r],Sq[(0,u)][r],0,m0_)
        a.valu('v_add_f32',sm,vals[0],vals[1])
        for x in vals[2:]: a.valu('v_add_f32',sm,sm,x)
        xlane(a,'v_add_f32',sm,tm)
        a.valu('v_rcp_f32',sm,sm)
        for x in vals: a.valu('v_mul_f32',x,x,sm)
        px=V(176+6*u,4); pm=V(180+6*u,2); Pq[u]=(px,pm)
        for T,o in ((1,0),(2,2)):
            for h2 in range(2):
                if (T,u) in Sq: bf16r(a,px[o+h2],Sq[(T,u)][2*h2],Sq[(T,u)][2*h2+1])
                else: a.valu('v_mov_b32',px[o+h2],0)
        for h2 in range(2): bf16r(a,pm[h2],Sq[(0,u)][2*h2],Sq[(0,u)][2*h2+1])
    a.salu('s_lshl_b32',sA,sI,1); a.salu('s_lshl_b32',sA,sA,5); a.salu('s_add_u32',sA,sA,sJ); a.salu('s_lshl_b32',sA,sA,12); a.salu('s_add_u32',sOut,sA,OX)
    for u in range(2):
        px,pm=Pq[u]
        O=[V(28+4*e,4) for e in range(8)] if u==0 else [V(188+4*e,4) for e in range(8)]
        if u==0: O=[V(60+4*e,4) for e in range(8)]
        for e in range(8): a.mfma('v_mfma_f32_16x16x32_bf16',O[e],VF[e],px,'0')
        for e in range(8): a.mfma('v_mfma_f32_16x16x16_bf16',O[e],V0[e],pm,O[e])
        for k4 in range(4):
            oo=V(28+4*(4*u+k4),4)
            for h in range(2):
                bf16r(a,oo[2*h],O[2*k4+h][0],O[2*k4+h][1]); bf16r(a,oo[2*h+1],O[2*k4+h][2],O[2*k4+h][3])
            a.salu('s_add_u32',sA,sOut,u*32*4096)
            a.bstore('buffer_store_dwordx4',oo,pL16,sWS,sA,off=k4*1024,mods='sc1')
    a.salu('s_lshl_b32',sA,sI,7); a.salu('s_add_u32',sD,sA,O_AT)
    signal(a,sD,1)

def task_fin(a):
    a.salu('s_movk_i32',sA,1280)
    a.valu('v_lshrrev_b32',pT[0],3,pLane); a.valu('v_mul_lo_u32',pT[0],pT[0],sA)
    a.valu('v_and_b32',pT[1],7,pLane); a.valu('v_lshlrev_b32',pT[2],1,pG); a.valu('v_xor_b32',pT[1],pT[1],pT[2]); a.valu('v_lshl_add_u32',pW0,pT[1],4,pT[0])
    rho=pT[2]; c=pT[3]; r7=pT[4]; b=pT[5]
    a.valu('v_lshrrev_b32',rho,2,pLane); a.valu('v_and_b32',c,3,pLane); a.valu('v_bfe_u32',r7,pLane,3,2)
    a.valu('v_lshlrev_b32',b,7,rho); a.valu('v_and_b32',pT[6],1,c); a.valu('v_lshl_add_u32',b,pT[6],4,b); a.valu('v_add_u32',b,sLB,b)
    a.valu('v_lshrrev_b32',c,1,c)
    for ct in range(4):
        a.valu('v_add_u32',pT[6],2*(ct//2),c); a.valu('v_xor_b32',pT[6],pT[6],r7); a.valu('v_lshl_add_u32',pT[6],pT[6],5,b)
        a.valu('v_add_u32',pTR[ct],8*(ct%2),pT[6])
    a.salu('s_lshr_b32',sRB,sI,2); rb_off(a,sD); wait_field(a,sD,F_H,15,4)
    a.salu('s_lshl_b32',sE,sWv_,4); a.salu('s_cmp_eq_u32',sWv_,3,ndst=0); a.salu('s_cselect_b32',sE,44,sE)
    a.salu('s_cmp_ge_u32',sWv_,2,ndst=0); a.salu('s_cselect_b32',sCn,12,16)
    a.salu('s_mul_i32',sWo_,sE,32*1280); a.salu('s_lshl_b32',sA,sJ,7); a.salu('s_add_u32',sWo_,sWo_,sA)
    a.salu('s_mul_i32',sAo,sI,2*HKS*1024); a.salu('s_lshl_b32',sA,sE,10); a.salu('s_add_u32',sAo,sAo,sA); a.salu('s_add_u32',sAo,sAo,HF)
    a.salu('s_mov_b32',sAst,HKS*1024)
    gemm_core(a,'g2',2,sW2,1280,sCn,True,NCT=4)
    for r in range(32):
        a.valu('v_accvgpr_read_b32',pT[2],A(r)); a.valu('v_accvgpr_write_b32',A(32+r),pT[2])
    a.salu('s_lshl_b32',sA,sI,7); a.salu('s_add_u32',sD,sA,O_AT)
    a.salu('s_mul_i32',sWo_,sWv_,1024*1280); a.salu('s_lshl_b32',sA,sJ,7); a.salu('s_add_u32',sWo_,sWo_,sA)
    a.salu('s_lshl_b32',sAo,sI,18); a.salu('s_lshl_b32',sA,sWv_,15); a.salu('s_add_u32',sAo,sAo,sA); a.salu('s_add_u32',sAo,sAo,OX)
    a.salu('s_mov_b32',sAst,131072); a.salu('s_mov_b32',sCn,32)
    if 'deep' in EXP: gemm_deep(a,sWo,1280,32,lambda:wait_field(a,sD,0,15,8,slp=4))
    else: gemm_core(a,'go',2,sWo,1280,sCn,True,NCT=4,hook=lambda:wait_field(a,sD,0,15,8,slp=4))
    a.valu('v_add_u32',pT[2],sLB,pL16)
    for qi in range(16): a.ds_write('ds_write_b128',pT[2],A(4*qi,4),qi*1024)
    a.salu('s_lshr_b32',sG,sWv_,1); a.salu('s_and_b32',sRow,sWv_,1)
    a.salu('s_lshl_b32',sA,sG,12); a.salu('s_lshl_b32',sB,sRow,10); a.salu('s_add_u32',sA,sA,sB)
    a.valu('v_add_u32',pT[2],sA,pL16); a.valu('v_add_u32',pT[5],65536,pT[2])
    xo=pT[3]; a.salu('s_movk_i32',sA,1280); a.valu('v_mul_lo_u32',xo,pN,sA); a.valu('v_lshl_add_u32',xo,pG,4,xo)
    a.salu('s_lshl_b32',sB,sI,5); a.salu('s_lshl_b32',sA,sRow,4); a.salu('s_add_u32',sB,sB,sA); a.salu('s_mul_i32',sE,sB,1280)
    a.salu('s_lshl_b32',sA,sJ,7); a.salu('s_lshl_b32',sB,sG,6); a.salu('s_add_u32',sA,sA,sB); a.salu('s_add_u32',sE,sE,sA)
    xr=V(28,4); b2=V(36,4); bo=pT[4]
    a.bload('buffer_load_dwordx4',xr,xo,sX,sE)
    a.valu('v_lshlrev_b32',bo,4,pG); a.bload('buffer_load_dwordx4',b2,bo,sB2,sA)
    a.wait(lgkm=0); a.barrier()
    bias=V(40,8)
    S_=[V(48,4),V(52,4)]; F_=[V(56,4),V(60,4)]
    n=0
    for st_,dst in ((0,S_),(1,F_)):
        for h in range(2):
            tmp=[V(64+16*n+4*k,4) for k in range(4)]; n+=1
            for wv in range(4):
                off=wv*32768+(st_*8+h*2)*1024
                if off<65536: a.ds_read('ds_read_b128',tmp[wv],pT[2],off)
                else: a.ds_read('ds_read_b128',tmp[wv],pT[5],off-65536)
    for k in range(4): unpk(a,bias[2*k],bias[2*k+1],b2[k])
    n=0
    for st_,dst in ((0,S_),(1,F_)):
        for h in range(2):
            tmp=[V(64+16*n+4*k,4) for k in range(4)]; n+=1
            for r in range(4):
                a.valu('v_add_f32',dst[h][r],tmp[0][r],tmp[1][r]); a.valu('v_add_f32',tmp[2][r],tmp[2][r],tmp[3][r]); a.valu('v_add_f32',dst[h][r],dst[h][r],tmp[2][r])
    o=V(128,4); t=V(132); e0=V(133); e1=V(134); x0=V(135); x1=V(136)
    a.salu('s_mov_b32',sA,'0xbfb8aa3b')
    for k in range(4):
        s0,s1=S_[k//2][2*(k%2)],S_[k//2][2*(k%2)+1]; f0,f1=F_[k//2][2*(k%2)],F_[k//2][2*(k%2)+1]
        bf16r(a,t,s0,s1); unpk(a,s0,s1,t)
        bf16r(a,t,f0,f1); unpk(a,f0,f1,t)
        a.valu('v_add_f32',f0,f0,bias[2*k]); a.valu('v_add_f32',f1,f1,bias[2*k+1])
        bf16r(a,t,f0,f1); unpk(a,f0,f1,t)
        for f,e in ((f0,e0),(f1,e1)):
            a.valu('v_mul_f32',e,sA,f); a.valu('v_exp_f32',e,e); a.valu('v_add_f32',e,1.0,e); a.valu('v_rcp_f32',e,e); a.valu('v_mul_f32',f,f,e)
        bf16r(a,t,f0,f1); unpk(a,f0,f1,t)
        a.valu('v_mul_f32',s0,s0,f0); a.valu('v_mul_f32',s1,s1,f1)
        bf16r(a,t,s0,s1); unpk(a,s0,s1,t)
        unpk(a,x0,x1,xr[k])
        a.valu('v_add_f32',s0,s0,x0); a.valu('v_add_f32',s1,s1,x1)
        bf16r(a,o[k],s0,s1)
    a.bstore('buffer_store_dwordx4',o,xo,sOUT,sE)
    a.wait(lgkm=0); a.barrier()
    par_setup(a)
```

```python
import sys
from par import *
KN='recurrent_scan__memory_aug_recurrent_mem_tr__dense_activation_squared_relu__prompt_kernel'
D1,D2=1,0
a=Asm()
NICW=int(os.environ.get('NICW','6'))
PROF=os.environ.get('PROF','')=='1'
def prof(dw,op='buffer_atomic_umax',vr=(V(20),V(21))):
    if not PROF: return
    a.raw("s_memrealtime s[98:99]",wr=['s98','s99'],kind='smem'); a.wait(lgkm=0)
    a.valu('v_mov_b32',vr[0],S(98)); a.valu('v_mov_b32',vr[1],4*dw)
    a.salu('s_mov_b64','exec',1)
    a.batomic(op,vr[0],vr[1],sDBG,'0',mods='sc1')
    a.salu('s_mov_b64','exec',-1)
a.label(KN)
a.salu('s_cmp_ge_u32',S(2),256,ndst=0); a.branch('s_cbranch_scc1','L_end')
if 'icw' in EXP:
    a.raw("s_getpc_b64 s[4:5]",wr=['s4','s5'],kind='salu')
    a.valu('v_lshlrev_b32',V(1),6,vT)
    for k in range(NICW):
        a.raw(f"global_load_dword v2, v1, s[4:5]",rd=['v1','s4','s5'],kind='vmstore')
        a.valu('v_add_u32',V(1),16384,V(1))
load_srds(a)
a.salu('s_mov_b32',S(101),0)
a.raw("s_getreg_b32 s3, hwreg(HW_REG_XCC_ID)",wr=['s3'],kind='salu')
a.salu('s_and_b32',S(3),S(3),15)
t=V(12); z=V(13); sv=S(4,2)
def bcast_atomic(off,val,dst,srd=sWS):
    a.valu('v_mov_b32',t,val); a.valu('v_mov_b32',z,off)
    a.valu('v_cmp_eq_u32','vcc',0,vT); a.salu('s_and_saveexec_b64',sv,'vcc')
    lbl=f'L_ba{len(a.ins)}'
    a.branch('s_cbranch_execz',lbl)
    a.batomic('buffer_atomic_add',t,z,srd,'0',ret=True,mods='sc1')
    a.wait(vm=0)
    a.valu('v_mov_b32',z,163832); a.ds_write('ds_write_b32',z,t)
    a.label(lbl)
    a.salu('s_mov_b64','exec',sv)
    a.wait(lgkm=0); a.barrier()
    a.valu('v_mov_b32',z,163832); a.ds_read('ds_read_b32',t,z); a.wait(lgkm=0)
    a.valu('v_readfirstlane_b32',dst,t)
    a.barrier()
prof(55)
par_setup(a)
a.salu('s_cmp_lg_u32',S(2),0,ndst=0); a.branch('s_cbranch_scc1','L_nz')
for k in range(4): a.valu('v_mov_b32',V(12+k),0)
a.valu('v_lshlrev_b32',V(16),4,vT); a.salu('s_mov_b32',sA,FL)
for k in range(NFLG*128//4096): a.bstore('buffer_store_dwordx4',V(12,4),V(16),sWS,sA,mods='sc1'); a.salu('s_add_u32',sA,sA,4096)
a.wait(vm=0); a.barrier()
a.valu('v_mov_b32',V(12),1); a.valu('v_mov_b32',V(13),128)
a.bstore('buffer_store_dword',V(12),V(13),sDBG,'0',mods='sc1')
a.label('L_nz')
a.salu('s_mov_b32',S(7),99)
a.salu('s_cmp_lg_u32',S(3),0,ndst=0); a.branch('s_cbranch_scc1','L_ln')
bcast_atomic(0,1,S(7),sDBG)
a.label('L_ln')
a.salu('s_mov_b32',sI,S(2)); task_ln(a)
a.salu('s_cmp_lg_u32',sWv_,0,ndst=0); a.branch('s_cbranch_scc1','L_fr1')
a.valu('v_mov_b32',V(13),128)
a.label('L_fr')
guard(a)
a.bload('buffer_load_dword',V(12),V(13),sDBG,'0',mods='sc1')
a.valu('v_cmp_eq_u32','vcc',0,V(12)); a.branch('s_cbranch_vccnz','L_fr')
a.label('L_fr1')
a.salu('s_lshr_b32',sRB,S(2),4); rb_off(a,sD); signal(a,sD,1<<F_LN)
a.barrier()
a.salu('s_mov_b32',sH,S(7))
a.salu('s_cmp_lt_u32',sH,32,ndst=0); a.branch('s_cbranch_scc1','L_chain')
a.label('L_par')
par_setup(a)
a.salu('s_add_u32',S(96),S(3),6); a.salu('s_mul_hi_u32',sA,S(96),'0x24924925'); a.salu('s_mul_i32',sA,sA,7); a.salu('s_sub_u32',S(96),S(96),sA); a.salu('s_mov_b32',S(97),0)
if 'warm' in EXP:
    a.valu('v_lshlrev_b32',V(16),4,vT); a.salu('s_mul_i32',sA,S(2),20480)
    for srd in (sWq,sWk,sWv,sWo):
        for k in range(5):
            a.salu('s_add_u32',sB,sA,4096*k); a.bload('buffer_load_dwordx4',V(220+4*(k%2),4),V(16),srd,sB,mods='nt').wr=set()
a.branch('s_branch','L_deq')
a.label('L_next')
a.valu('v_mov_b32',z,0)
a.salu('s_cmp_lg_u32',sWv_,0,ndst=0); a.branch('s_cbranch_scc1','L_fb0')
a.bload('buffer_load_dword',t,z,sDBG,'0',mods='sc1')
a.valu('v_mov_b32',z,163828); a.ds_write('ds_write_b32',z,t)
a.label('L_fb0')
a.wait(lgkm=0); a.barrier()
a.valu('v_mov_b32',z,163828); a.ds_read('ds_read_b32',t,z); a.wait(lgkm=0); a.valu('v_readfirstlane_b32',sA,t)
a.salu('s_cmp_ge_u32',sA,32,ndst=0); a.branch('s_cbranch_scc1','L_deq')
bcast_atomic(0,1,sH,sDBG)
a.salu('s_cmp_lt_u32',sH,32,ndst=0); a.branch('s_cbranch_scc1','L_chain')
par_setup(a)
a.label('L_deq')
sQ=S(96); sPh=S(97)
a.salu('s_cmp_lg_u32',sPh,0,ndst=0); a.branch('s_cbranch_scc1','L_phB')
a.label('L_qtry')
a.salu('s_lshl_b32',sA,sQ,7); a.salu('s_add_u32',sA,sA,O_Q)
bcast_atomic(sA,1,sTask)
a.salu('s_cmp_lt_u32',sTask,64,ndst=0); a.branch('s_cbranch_scc1','L_qgot')
a.valu('v_lshlrev_b32',z,7,pLane); a.valu('v_mov_b32',t,64)
a.salu('s_mov_b32',sA,O_Q); a.salu('s_mov_b64','exec',0x7f)
a.bload('buffer_load_dword',t,z,sWS,sA,mods='sc1').rd.add('v12')
a.salu('s_mov_b64','exec',-1)
a.valu('v_cmp_gt_u32','vcc',64,t)
a.salu('s_and_b32',sA,'vcc_lo',0x7f)
a.valu('v_mov_b32',t,sA); a.valu('v_mov_b32',z,163828)
a.salu('s_cmp_lg_u32',sWv_,0,ndst=0); a.branch('s_cbranch_scc1','L_q1')
a.ds_write('ds_write_b32',z,t)
a.label('L_q1')
a.wait(lgkm=0); a.barrier()
a.ds_read('ds_read_b32',t,z); a.wait(lgkm=0); a.valu('v_readfirstlane_b32',sA,t); a.barrier()
a.salu('s_cmp_eq_u32',sA,0,ndst=0); a.branch('s_cbranch_scc1','L_toB')
a.salu('s_ff1_i32_b32',sQ,sA)
a.branch('s_branch','L_qtry')
a.label('L_toB')
a.salu('s_mov_b32',sPh,1); a.branch('s_branch','L_phB')
a.label('L_qgot')
a.salu('s_cmp_lt_u32',sQ,2,ndst=0); a.branch('s_cbranch_scc0','L_d2')
a.salu('s_cmp_lt_u32',sTask,48,ndst=0); a.branch('s_cbranch_scc0','L_d1o')
a.salu('s_mul_hi_u32',sRB,sTask,'0x55555556'); a.salu('s_mul_i32',sB,sRB,3); a.salu('s_sub_u32',sB,sTask,sB); a.branch('s_branch','L_dkv')
a.label('L_d1o')
a.salu('s_sub_u32',sRB,sTask,48); a.salu('s_mov_b32',sA,sQ); a.branch('s_branch','L_doth')
a.label('L_d2')
a.salu('s_cmp_lt_u32',sTask,32,ndst=0); a.branch('s_cbranch_scc0','L_d2o')
a.salu('s_lshr_b32',sRB,sTask,1); a.salu('s_and_b32',sB,sTask,1); a.branch('s_branch','L_dkv')
a.label('L_d2o')
a.salu('s_sub_u32',sB,sTask,32); a.salu('s_lshr_b32',sRB,sB,1); a.salu('s_and_b32',sB,sB,1)
a.salu('s_lshl_b32',sA,sQ,1); a.salu('s_sub_u32',sA,sA,2); a.salu('s_add_u32',sA,sA,sB); a.branch('s_branch','L_doth')
a.label('L_dkv')
if 'thr' in EXP:
    n=int(EXP.split('thr')[1].split('_')[0])
    a.salu('s_cmp_lt_u32',sRB,2,ndst=0); a.branch('s_cbranch_scc1','L_nothr')
    a.salu('s_cmp_ge_u32',sTask,32,ndst=0); a.branch('s_cbranch_scc1','L_nothr')
    for k in range(n): a.raw('s_sleep 127')
    a.label('L_nothr')
a.salu('s_mul_i32',sA,sB,7); a.salu('s_add_u32',sA,sA,sQ)
a.salu('s_and_b32',sB,sA,7); a.salu('s_lshl_b32',sB,sB,2); a.salu('s_add_u32',sJ,sB,sWv_)
a.salu('s_cmp_ge_u32',sA,8,ndst=0); a.branch('s_cbranch_scc1','L_tv')
task_kq(a,'gk',sWk,KX,F_KV); prof(61); a.branch('s_branch','L_next')
a.label('L_tv'); task_v(a); a.branch('s_branch','L_next')
a.label('L_doth')
a.salu('s_and_b32',sB,sA,7); a.salu('s_lshl_b32',sB,sB,2); a.salu('s_add_u32',sJ,sB,sWv_)
a.salu('s_cmp_ge_u32',sA,8,ndst=0); a.branch('s_cbranch_scc1','L_tf')
task_kq(a,'gq',sWq,QX,F_Q); a.branch('s_branch','L_next')
a.label('L_tf'); task_f1(a); prof(62); a.branch('s_branch','L_next')
a.label('L_phB')
bcast_atomic(O_TASK,1,sTask)
a.salu('s_cmp_lt_u32',sTask,66*18,ndst=0); a.branch('s_cbranch_scc0','L_end')
a.salu('s_mul_hi_u32',sI,sTask,'0x0e38e38f'); a.salu('s_mul_i32',sB,sI,18); a.salu('s_sub_u32',sA,sTask,sB)
a.salu('s_cmp_ge_u32',sA,8,ndst=0); a.branch('s_cbranch_scc1','L_tfin')
a.salu('s_cmp_ge_u32',sI,64,ndst=0); a.branch('s_cbranch_scc1','L_next')
a.salu('s_lshl_b32',sB,sA,2); a.salu('s_add_u32',sJ,sB,sWv_)
task_at(a); prof(63); a.branch('s_branch','L_next')
a.label('L_tfin')
a.salu('s_cmp_lt_u32',sI,2,ndst=0); a.branch('s_cbranch_scc1','L_next')
a.salu('s_sub_u32',sI,sI,2); a.salu('s_sub_u32',sJ,sA,8)
task_fin(a); prof(60); a.branch('s_branch','L_next')
a.label('L_chain')
prof(56)
chain_setup(a)
chain_init_comm(a)
a.wait(vm=0); a.barrier()
a.salu('s_lshl_b32',sT0,1,S(3))
a.valu('v_mov_b32',P(0),sT0); a.valu('v_mov_b32',P(1),O_CHBAR+4); a.valu('v_mov_b32',P(2),1); a.valu('v_mov_b32',P(3),O_CHBAR)
a.salu('s_cmp_lg_u32',sW,0,ndst=0); a.branch('s_cbranch_scc1','L_ch0')
a.salu('s_mov_b64','exec',1)
a.batomic('buffer_atomic_or',P(0),P(1),sWS,'0',mods='sc1'); a.wait(vm=0)
a.batomic('buffer_atomic_add',P(2),P(3),sWS,'0',mods='sc1')
a.salu('s_mov_b64','exec',-1)
a.label('L_ch0')
chain_load_weights(a)
prof(57,vr=(P(70),P(71)))
cuid=[0]
sKVm=S(47)
a.salu('s_mov_b32',sKVm,0)
def kv_wait(a,first=False):
    cuid[0]+=1; l=f'L_kvw{cuid[0]}'
    if first: a.salu('s_mov_b32',sT0,0)
    else:
        a.salu('s_add_u32',sT0,sStep,1); a.salu('s_and_b32',sT1,sT0,3); a.salu('s_cmp_lg_u32',sT1,0,ndst=0); a.branch('s_cbranch_scc1',l+'d')
        a.salu('s_cmp_ge_u32',sT0,64,ndst=0); a.branch('s_cbranch_scc1',l+'d')
        a.salu('s_lshr_b32',sT0,sT0,2)
    a.salu('s_mov_b32',sT1,O_RB)
    a.valu('v_and_b32',P(41),0xf0,vL16); a.valu('v_lshlrev_b32',P(41),3,P(41))
    a.label(l)
    guard(a)
    a.salu('s_bitcmp1_b32',sKVm,sT0,ndst=0); a.branch('s_cbranch_scc1',l+'d')
    a.bload('buffer_load_dword',P(40),P(41),sWS,sT1,mods='sc1')
    a.valu('v_bfe_u32',P(40),P(40),F_KV,6); a.valu('v_cmp_le_u32','vcc',16,P(40))
    a.salu('s_and_b32',sKVm,'vcc_lo',0xffff)
    a.salu('s_bitcmp1_b32',sKVm,sT0,ndst=0); a.branch('s_cbranch_scc1',l+'d')
    a.raw('s_sleep 4'); a.branch('s_branch',l)
    a.label(l+'d')
kv_wait(a,True)
a.valu('v_mov_b32',P(4),O_CHBAR)
a.label('L_arr')
guard(a)
a.bload('buffer_load_dwordx2',P(0,2),P(4),sWS,'0',mods='sc1')
a.valu('v_cmp_gt_u32','vcc',32,P(0))
a.branch('s_cbranch_vccnz','L_arr')
a.valu('v_readfirstlane_b32',S(6),P(1))
sPG=S(46)
a.salu('s_lshl_b32',sT0,sH,2); a.salu('s_add_u32',sT0,sT0,sW); a.salu('s_lshl_b32',sT1,sT0,7); a.salu('s_add_u32',sT1,sT1,FL+0x8000)
a.salu('s_cmp_eq_u32',sT0,3,ndst=0); a.salu('s_cselect_b32',sPG,O_PROG,sT1)
def post_pub(a):
    a.salu('s_sub_u32',sT0,sStep,2); a.valu('v_mov_b32',P(24),sT0); a.valu('v_mov_b32',P(25),0)
    a.salu('s_mov_b64','exec',1)
    a.bstore('buffer_store_dword',P(24),P(25),sWS,sPG,mods='sc1')
    a.salu('s_mov_b64','exec',-1)
chain_first(a,post_pub)
prof(58,vr=(P(40),P(41)))
def prog(a):
    cuid[0]+=1; l=f'L_pg{cuid[0]}'
    a.salu('s_cmp_lg_u32',sW,3,ndst=0); a.branch('s_cbranch_scc1',l+'e')
    kv_wait(a)
    a.label(l+'e')
a.salu('s_bcnt1_i32_b32',sT0,S(6)); a.salu('s_cmp_lg_u32',sT0,1,ndst=0); a.branch('s_cbranch_scc1','L_slow')
chain_loop(a,'','f',D1,D2,prog=prog,post_pub=post_pub)
a.branch('s_branch','L_chend')
a.label('L_slow')
chain_loop(a,'sc1','s',D1,D2,prog=prog,post_pub=post_pub)
a.label('L_chend')
prof(59,vr=(P(70),P(71)))
a.wait(vm=0); a.barrier()
a.salu('s_cmp_lg_u32',sW,0,ndst=0); a.branch('s_cbranch_scc1','L_end')
a.valu('v_mov_b32',P(0),1); a.valu('v_mov_b32',P(1),O_PROG+4)
a.salu('s_mov_b64','exec',1)
a.batomic('buffer_atomic_add',P(0),P(1),sWS,'0',mods='sc1')
a.label('L_end')
a.raw('s_endpgm')
a.auto_wait(); a.hazards()
ref=open('recurrent_scan__memory_aug_recurrent_mem_tr__dense_activation_squared_relu__prompt.s.ref').read()
hdr=ref[:ref.index('; Override launch geometry')]+f"""; @launch grid=(256,1,1) block=(256,1,1) lds=163840
.amdgcn_target "amdgcn-amd-amdhsa--gfx950"
.text
.globl {KN}
.type {KN},@function
.p2align 8
"""
ftr=f"""
.section .rodata,"a"
.p2align 6
.amdhsa_kernel {KN}
  .amdhsa_next_free_vgpr 512
  .amdhsa_next_free_sgpr 102
  .amdhsa_accum_offset 256
  .amdhsa_group_segment_fixed_size 0
  .amdhsa_kernarg_size 120
  .amdhsa_user_sgpr_count 2
  .amdhsa_user_sgpr_kernarg_segment_ptr 1
  .amdhsa_system_sgpr_workgroup_id_x 1
.end_amdhsa_kernel
"""
out=sys.argv[1] if len(sys.argv)>1 else 'recurrent_scan__memory_aug_recurrent_mem_tr__dense_activation_squared_relu__prompt.s'
open(out,'w').write(hdr+a.text()+ftr)
print(len(a.ins),'instructions')
```

```python
import sys
from par import *
KN='recurrent_scan__memory_aug_recurrent_mem_tr__dense_activation_squared_relu__prompt_kernel'
D1,D2=1,0
a=Asm()
NICW=int(os.environ.get('NICW','6'))
PROF=os.environ.get('PROF','')=='1'
def prof(dw,op='buffer_atomic_umax',vr=(V(20),V(21))):
    if not PROF: return
    a.raw("s_memrealtime s[98:99]",wr=['s98','s99'],kind='smem'); a.wait(lgkm=0)
    a.valu('v_mov_b32',vr[0],S(98)); a.valu('v_mov_b32',vr[1],4*dw)
    a.salu('s_mov_b64','exec',1)
    a.batomic(op,vr[0],vr[1],sDBG,'0',mods='sc1')
    a.salu('s_mov_b64','exec',-1)
a.label(KN)
a.salu('s_cmp_ge_u32',S(2),256,ndst=0); a.branch('s_cbranch_scc1','L_end')
if 'icw' in EXP:
    a.raw("s_getpc_b64 s[4:5]",wr=['s4','s5'],kind='salu')
    a.valu('v_lshlrev_b32',V(1),6,vT)
    for k in range(NICW):
        a.raw(f"global_load_dword v2, v1, s[4:5]",rd=['v1','s4','s5'],kind='vmstore')
        a.valu('v_add_u32',V(1),16384,V(1))
load_srds(a)
a.salu('s_mov_b32',S(101),0)
a.raw("s_getreg_b32 s3, hwreg(HW_REG_XCC_ID)",wr=['s3'],kind='salu')
a.salu('s_and_b32',S(3),S(3),15)
t=V(12); z=V(13); sv=S(4,2)
def bcast_atomic(off,val,dst,srd=sWS):
    a.valu('v_mov_b32',t,val); a.valu('v_mov_b32',z,off)
    a.valu('v_cmp_eq_u32','vcc',0,vT); a.salu('s_and_saveexec_b64',sv,'vcc')
    lbl=f'L_ba{len(a.ins)}'
    a.branch('s_cbranch_execz',lbl)
    a.batomic('buffer_atomic_add',t,z,srd,'0',ret=True,mods='sc1')
    a.wait(vm=0)
    a.valu('v_mov_b32',z,163832); a.ds_write('ds_write_b32',z,t)
    a.label(lbl)
    a.salu('s_mov_b64','exec',sv)
    a.wait(lgkm=0); a.barrier()
    a.valu('v_mov_b32',z,163832); a.ds_read('ds_read_b32',t,z); a.wait(lgkm=0)
    a.valu('v_readfirstlane_b32',dst,t)
    a.barrier()
prof(55)
par_setup(a)
a.salu('s_cmp_lg_u32',S(2),0,ndst=0); a.branch('s_cbranch_scc1','L_nz')
for k in range(4): a.valu('v_mov_b32',V(12+k),0)
a.valu('v_lshlrev_b32',V(16),4,vT); a.salu('s_mov_b32',sA,FL)
for k in range(NFLG*128//4096): a.bstore('buffer_store_dwordx4',V(12,4),V(16),sWS,sA,mods='sc1'); a.salu('s_add_u32',sA,sA,4096)
a.wait(vm=0); a.barrier()
a.valu('v_mov_b32',V(12),1); a.valu('v_mov_b32',V(13),128)
a.bstore('buffer_store_dword',V(12),V(13),sDBG,'0',mods='sc1')
a.label('L_nz')
a.salu('s_mov_b32',S(7),99)
if 'anyx' in EXP: pass
elif 'fewx' in EXP:
    a.salu('s_cmp_lg_u32',S(3),0,ndst=0); a.branch('s_cbranch_scc1','L_ln')
    a.salu('s_cmp_ge_u32',S(2),128,ndst=0); a.branch('s_cbranch_scc1','L_ln')
else:
    a.salu('s_cmp_lg_u32',S(3),0,ndst=0); a.branch('s_cbranch_scc1','L_ln')
bcast_atomic(0,1,S(7),sDBG)
a.label('L_ln')
a.salu('s_mov_b32',sI,S(2)); task_ln(a)
a.salu('s_cmp_lg_u32',sWv_,0,ndst=0); a.branch('s_cbranch_scc1','L_fr1')
a.valu('v_mov_b32',V(13),128)
a.label('L_fr')
guard(a)
a.bload('buffer_load_dword',V(12),V(13),sDBG,'0',mods='sc1')
a.valu('v_cmp_eq_u32','vcc',0,V(12)); a.branch('s_cbranch_vccnz','L_fr')
a.label('L_fr1')
a.salu('s_lshr_b32',sRB,S(2),4); rb_off(a,sD); signal(a,sD,1<<F_LN)
a.barrier()
a.salu('s_mov_b32',sH,S(7))
a.salu('s_cmp_lt_u32',sH,32,ndst=0); a.branch('s_cbranch_scc1','L_chain')
a.label('L_par')
par_setup(a)
a.salu('s_add_u32',S(96),S(3),6); a.salu('s_mul_hi_u32',sA,S(96),'0x24924925'); a.salu('s_mul_i32',sA,sA,7); a.salu('s_sub_u32',S(96),S(96),sA); a.salu('s_mov_b32',S(97),0)
if 'warm' in EXP:
    a.valu('v_lshlrev_b32',V(16),4,vT); a.salu('s_mul_i32',sA,S(2),20480)
    for srd in (sWq,sWk,sWv,sWo):
        for k in range(5):
            a.salu('s_add_u32',sB,sA,4096*k); a.bload('buffer_load_dwordx4',V(220+4*(k%2),4),V(16),srd,sB,mods='nt').wr=set()
a.branch('s_branch','L_deq')
a.label('L_next')
a.valu('v_mov_b32',z,0)
a.salu('s_cmp_lg_u32',sWv_,0,ndst=0); a.branch('s_cbranch_scc1','L_fb0')
a.bload('buffer_load_dword',t,z,sDBG,'0',mods='sc1')
a.valu('v_mov_b32',z,163828); a.ds_write('ds_write_b32',z,t)
a.label('L_fb0')
a.wait(lgkm=0); a.barrier()
a.valu('v_mov_b32',z,163828); a.ds_read('ds_read_b32',t,z); a.wait(lgkm=0); a.valu('v_readfirstlane_b32',sA,t)
a.salu('s_cmp_ge_u32',sA,32,ndst=0); a.branch('s_cbranch_scc1','L_deq')
bcast_atomic(0,1,sH,sDBG)
a.salu('s_cmp_lt_u32',sH,32,ndst=0); a.branch('s_cbranch_scc1','L_chain')
par_setup(a)
a.label('L_deq')
sQ=S(96); sPh=S(97)
a.salu('s_cmp_lg_u32',sPh,0,ndst=0); a.branch('s_cbranch_scc1','L_phB')
a.label('L_qtry')
a.salu('s_lshl_b32',sA,sQ,7); a.salu('s_add_u32',sA,sA,O_Q)
bcast_atomic(sA,1,sTask)
a.salu('s_cmp_lt_u32',sTask,64,ndst=0); a.branch('s_cbranch_scc1','L_qgot')
a.valu('v_lshlrev_b32',z,7,pLane); a.valu('v_mov_b32',t,64)
a.salu('s_mov_b32',sA,O_Q); a.salu('s_mov_b64','exec',0x7f)
a.bload('buffer_load_dword',t,z,sWS,sA,mods='sc1').rd.add('v12')
a.salu('s_mov_b64','exec',-1)
a.valu('v_cmp_gt_u32','vcc',64,t)
a.salu('s_and_b32',sA,'vcc_lo',0x7f)
a.valu('v_mov_b32',t,sA); a.valu('v_mov_b32',z,163828)
a.salu('s_cmp_lg_u32',sWv_,0,ndst=0); a.branch('s_cbranch_scc1','L_q1')
a.ds_write('ds_write_b32',z,t)
a.label('L_q1')
a.wait(lgkm=0); a.barrier()
a.ds_read('ds_read_b32',t,z); a.wait(lgkm=0); a.valu('v_readfirstlane_b32',sA,t); a.barrier()
a.salu('s_cmp_eq_u32',sA,0,ndst=0); a.branch('s_cbranch_scc1','L_toB')
a.salu('s_ff1_i32_b32',sQ,sA)
a.branch('s_branch','L_qtry')
a.label('L_toB')
a.salu('s_mov_b32',sPh,1); a.branch('s_branch','L_phB')
a.label('L_qgot')
a.salu('s_cmp_lt_u32',sQ,2,ndst=0); a.branch('s_cbranch_scc0','L_d2')
a.salu('s_cmp_lt_u32',sTask,48,ndst=0); a.branch('s_cbranch_scc0','L_d1o')
a.salu('s_mul_hi_u32',sRB,sTask,'0x55555556'); a.salu('s_mul_i32',sB,sRB,3); a.salu('s_sub_u32',sB,sTask,sB); a.branch('s_branch','L_dkv')
a.label('L_d1o')
a.salu('s_sub_u32',sRB,sTask,48); a.salu('s_mov_b32',sA,sQ); a.branch('s_branch','L_doth')
a.label('L_d2')
a.salu('s_cmp_lt_u32',sTask,32,ndst=0); a.branch('s_cbranch_scc0','L_d2o')
a.salu('s_lshr_b32',sRB,sTask,1); a.salu('s_and_b32',sB,sTask,1); a.branch('s_branch','L_dkv')
a.label('L_d2o')
a.salu('s_sub_u32',sB,sTask,32); a.salu('s_lshr_b32',sRB,sB,1); a.salu('s_and_b32',sB,sB,1)
a.salu('s_lshl_b32',sA,sQ,1); a.salu('s_sub_u32',sA,sA,2); a.salu('s_add_u32',sA,sA,sB); a.branch('s_branch','L_doth')
a.label('L_dkv')
if 'thr' in EXP:
    n=int(EXP.split('thr')[1].split('_')[0])
    a.salu('s_cmp_lt_u32',sRB,2,ndst=0); a.branch('s_cbranch_scc1','L_nothr')
    a.salu('s_cmp_ge_u32',sTask,32,ndst=0); a.branch('s_cbranch_scc1','L_nothr')
    for k in range(n): a.raw('s_sleep 127')
    a.label('L_nothr')
a.salu('s_mul_i32',sA,sB,7); a.salu('s_add_u32',sA,sA,sQ)
a.salu('s_and_b32',sB,sA,7); a.salu('s_lshl_b32',sB,sB,2); a.salu('s_add_u32',sJ,sB,sWv_)
a.salu('s_cmp_ge_u32',sA,8,ndst=0); a.branch('s_cbranch_scc1','L_tv')
task_kq(a,'gk',sWk,KX,F_KV); prof(61); a.branch('s_branch','L_next')
a.label('L_tv'); task_v(a); a.branch('s_branch','L_next')
a.label('L_doth')
a.salu('s_and_b32',sB,sA,7); a.salu('s_lshl_b32',sB,sB,2); a.salu('s_add_u32',sJ,sB,sWv_)
a.salu('s_cmp_ge_u32',sA,8,ndst=0); a.branch('s_cbranch_scc1','L_tf')
task_kq(a,'gq',sWq,QX,F_Q); a.branch('s_branch','L_next')
a.label('L_tf'); task_f1(a); prof(62); a.branch('s_branch','L_next')
a.label('L_phB')
bcast_atomic(O_TASK,1,sTask)
a.salu('s_cmp_lt_u32',sTask,66*18,ndst=0); a.branch('s_cbranch_scc0','L_end')
a.salu('s_mul_hi_u32',sI,sTask,'0x0e38e38f'); a.salu('s_mul_i32',sB,sI,18); a.salu('s_sub_u32',sA,sTask,sB)
a.salu('s_cmp_ge_u32',sA,8,ndst=0); a.branch('s_cbranch_scc1','L_tfin')
a.salu('s_cmp_ge_u32',sI,64,ndst=0); a.branch('s_cbranch_scc1','L_next')
a.salu('s_lshl_b32',sB,sA,2); a.salu('s_add_u32',sJ,sB,sWv_)
task_at(a); prof(63); a.branch('s_branch','L_next')
a.label('L_tfin')
a.salu('s_cmp_lt_u32',sI,2,ndst=0); a.branch('s_cbranch_scc1','L_next')
a.salu('s_sub_u32',sI,sI,2); a.salu('s_sub_u32',sJ,sA,8)
task_fin(a); prof(60); a.branch('s_branch','L_next')
a.label('L_chain')
prof(56)
chain_setup(a)
chain_init_comm(a)
a.wait(vm=0); a.barrier()
a.salu('s_lshl_b32',sT0,1,S(3))
a.valu('v_mov_b32',P(0),sT0); a.valu('v_mov_b32',P(1),O_CHBAR+4); a.valu('v_mov_b32',P(2),1); a.valu('v_mov_b32',P(3),O_CHBAR)
a.salu('s_cmp_lg_u32',sW,0,ndst=0); a.branch('s_cbranch_scc1','L_ch0')
a.salu('s_mov_b64','exec',1)
a.batomic('buffer_atomic_or',P(0),P(1),sWS,'0',mods='sc1'); a.wait(vm=0)
a.batomic('buffer_atomic_add',P(2),P(3),sWS,'0',mods='sc1')
a.salu('s_mov_b64','exec',-1)
a.label('L_ch0')
chain_load_weights(a)
prof(57,vr=(P(70),P(71)))
cuid=[0]
sKVm=S(47)
a.salu('s_mov_b32',sKVm,0)
def kv_wait(a,first=False):
    cuid[0]+=1; l=f'L_kvw{cuid[0]}'
    if first: a.salu('s_mov_b32',sT0,0)
    else:
        a.salu('s_add_u32',sT0,sStep,1); a.salu('s_and_b32',sT1,sT0,3); a.salu('s_cmp_lg_u32',sT1,0,ndst=0); a.branch('s_cbranch_scc1',l+'d')
        a.salu('s_cmp_ge_u32',sT0,64,ndst=0); a.branch('s_cbranch_scc1',l+'d')
        a.salu('s_lshr_b32',sT0,sT0,2)
    a.salu('s_mov_b32',sT1,O_RB)
    a.valu('v_and_b32',P(41),0xf0,vL16); a.valu('v_lshlrev_b32',P(41),3,P(41))
    a.label(l)
    guard(a)
    a.salu('s_bitcmp1_b32',sKVm,sT0,ndst=0); a.branch('s_cbranch_scc1',l+'d')
    a.bload('buffer_load_dword',P(40),P(41),sWS,sT1,mods='sc1')
    a.valu('v_bfe_u32',P(40),P(40),F_KV,6); a.valu('v_cmp_le_u32','vcc',16,P(40))
    a.salu('s_and_b32',sKVm,'vcc_lo',0xffff)
    a.salu('s_bitcmp1_b32',sKVm,sT0,ndst=0); a.branch('s_cbranch_scc1',l+'d')
    a.raw('s_sleep 4'); a.branch('s_branch',l)
    a.label(l+'d')
kv_wait(a,True)
a.valu('v_mov_b32',P(4),O_CHBAR)
a.label('L_arr')
guard(a)
a.bload('buffer_load_dwordx2',P(0,2),P(4),sWS,'0',mods='sc1')
a.valu('v_cmp_gt_u32','vcc',32,P(0))
a.branch('s_cbranch_vccnz','L_arr')
a.valu('v_readfirstlane_b32',S(6),P(1))
sPG=S(46)
a.salu('s_lshl_b32',sT0,sH,2); a.salu('s_add_u32',sT0,sT0,sW); a.salu('s_lshl_b32',sT1,sT0,7); a.salu('s_add_u32',sT1,sT1,FL+0x8000)
a.salu('s_cmp_eq_u32',sT0,3,ndst=0); a.salu('s_cselect_b32',sPG,O_PROG,sT1)
def post_pub(a):
    a.salu('s_sub_u32',sT0,sStep,2); a.valu('v_mov_b32',P(24),sT0); a.valu('v_mov_b32',P(25),0)
    a.salu('s_mov_b64','exec',1)
    a.bstore('buffer_store_dword',P(24),P(25),sWS,sPG,mods='sc1')
    a.salu('s_mov_b64','exec',-1)
chain_first(a,post_pub)
prof(58,vr=(P(40),P(41)))
def prog(a):
    cuid[0]+=1; l=f'L_pg{cuid[0]}'
    a.salu('s_cmp_lg_u32',sW,3,ndst=0); a.branch('s_cbranch_scc1',l+'e')
    kv_wait(a)
    a.label(l+'e')
a.salu('s_bcnt1_i32_b32',sT0,S(6)); a.salu('s_cmp_lg_u32',sT0,1,ndst=0); a.branch('s_cbranch_scc1','L_slow')
chain_loop(a,'','f',D1,D2,prog=prog,post_pub=post_pub)
a.branch('s_branch','L_chend')
a.label('L_slow')
chain_loop(a,'sc1','s',D1,D2,prog=prog,post_pub=post_pub)
a.label('L_chend')
prof(59,vr=(P(70),P(71)))
a.wait(vm=0); a.barrier()
a.salu('s_cmp_lg_u32',sW,0,ndst=0); a.branch('s_cbranch_scc1','L_end')
a.valu('v_mov_b32',P(0),1); a.valu('v_mov_b32',P(1),O_PROG+4)
a.salu('s_mov_b64','exec',1)
a.batomic('buffer_atomic_add',P(0),P(1),sWS,'0',mods='sc1')
a.label('L_end')
a.raw('s_endpgm')
a.auto_wait(); a.hazards()
ref=open('recurrent_scan__memory_aug_recurrent_mem_tr__dense_activation_squared_relu__prompt.s.ref').read()
hdr=ref[:ref.index('; Override launch geometry')]+f"""; @launch grid=(256,1,1) block=(256,1,1) lds=163840
.amdgcn_target "amdgcn-amd-amdhsa--gfx950"
.text
.globl {KN}
.type {KN},@function
.p2align 8
"""
ftr=f"""
.section .rodata,"a"
.p2align 6
.amdhsa_kernel {KN}
  .amdhsa_next_free_vgpr 512
  .amdhsa_next_free_sgpr 102
  .amdhsa_accum_offset 256
  .amdhsa_group_segment_fixed_size 0
  .amdhsa_kernarg_size 120
  .amdhsa_user_sgpr_count 2
  .amdhsa_user_sgpr_kernarg_segment_ptr 1
  .amdhsa_system_sgpr_workgroup_id_x 1
.end_amdhsa_kernel
"""
out=sys.argv[1] if len(sys.argv)>1 else 'recurrent_scan__memory_aug_recurrent_mem_tr__dense_activation_squared_relu__prompt.s'
open(out,'w').write(hdr+a.text()+ftr)
print(len(a.ins),'instructions')
```

```python
from asmlib import *
import os
EXP=os.environ.get('EXP','')
XN=0x0; KX=0x0400000; VX=0x1400000; QX=0x2400000; HF=0x3400000; OX=0x3C00000
KMV=0x4C20000; PB=0x5480000; MB=0x5500000; SW=0x5600000; FL=0x5A00000
WS_BYTES=268435456
LMEM=131072; LKX=LMEM+10240; LVX=LKX+8192; LQE=LVX+8192; LKE=LQE+2048; LVE=LKE+2048
sX=S(8,4); sM0=S(12,4); sWq=S(16,4); sWk=S(20,4); sWv=S(24,4); sWo=S(28,4); sW1=S(32,4); sB1=S(36,4)
sW2=S(40,4); sB2=S(44,4); sOUT=S(48,4); sDBG=S(52,4); sWS=S(56,4)
SRDS=[(sX,0,2621440),(sM0,8,10240),(sWq,16,5242880),(sWk,24,5242880),(sWv,32,5242880),(sWo,40,5242880),
      (sW1,64,2211840),(sB1,72,3456),(sW2,80,2211840),(sB2,88,1280),(sOUT,96,2621440),(sDBG,104,256),(sWS,112,WS_BYTES)]
sH=S(60); sW=S(61); sStep=S(62); sTag=S(63); sMask=S(64); sUnit=S(65); sRSoff=S(66); sMSToff=S(67)
sPst=[S(68+i) for i in range(5)]; sAG=[S(73+i) for i in range(5)]; sSW=S(78); sKXo=S(79); sKMVo=S(80); sVXo=S(81)
sHi=S(82,2); sMaskP=S(84); sBM=S(85); sT0=S(86); sT1=S(87); sT2=S(88); sT3=S(89); sC=S(90,2); sT4=S(92); sT5=S(93); sPubL=S(94); sPerm=S(95)
sSWb=[S(32+i) for i in range(6)]
sDM=[S(40+i) for i in range(4)]
vT=V(0); vWT=V(1); vMEMr=V(2); vFR=V(3); vQEr=V(4); vVEr=V(5); vQEw=V(6); vMWA=V(7)
vPst=V(8); vMst=V(12+27); vNEG=V(9); vL16=V(10); vIdx=V(11); vJunk=V(0)
PB0=12
def P(i,n=1): return V(PB0+i,n)
WV0=PB0+84

SAFE=os.environ.get('SAFE','')=='1'
def guard(a):
    if SAFE:
        a.salu('s_add_u32',S(101),S(101),1); a.salu('s_cmp_gt_u32',S(101),0x300000,ndst=0); a.branch('s_cbranch_scc1','L_end')
def load_srds(a):
    for srd,off,n in SRDS:
        a.raw(f"s_load_dwordx2 {S(srd.i,2)}, s[0:1], {off}", wr=S(srd.i,2).regs(), kind='smem')
    a.wait(lgkm=0)
    for srd,off,n in SRDS:
        a.salu('s_and_b32', srd[1], srd[1], '0xffff')
        a.salu('s_mov_b32', srd[2], str(n))
        a.salu('s_mov_b32', srd[3], '0x00020000')

LDS_SLABS=[('q',1),('q',3),('q',5),('q',7),('q',9),('o',1,0),('o',2,0),('o',3,0)]
STREAM=[('k',1,0),('k',1,1),('k',2,0),('k',2,1), ('k',8,0),('k',8,1),('k',9,0),('k',9,1),('v',9,1), ('o',4,0,1),('o',4,1,0),('o',4,1,1)]
ALL_SLABS=[(m,ks) for ks in range(10) for m in 'qk']+[('v',ks) for ks in range(10)]+[('o',i,k2) for i in range(5) for k2 in range(2)]
tile_loc={}
_res=[V(WV0+8*i,8) for i in range(20)]+[A(8*i,8) for i in range(32)]
_ri=0
for sl in ALL_SLABS:
    for ct in range(2):
        t=sl+(ct,)
        if sl in LDS_SLABS: tile_loc[t]=('lds',LDS_SLABS.index(sl)*2+ct)
        elif t in STREAM: tile_loc[t]=('str',STREAM.index(t))
        else: tile_loc[t]=('reg',_res[_ri]); _ri+=1
assert _ri==len(_res)==52, _ri

def chain_setup(a):
    L=P(0); g=P(1); n=P(2); t1=P(3); t2=P(4); t3=P(5); u=P(6)
    a.valu('v_and_b32',L,63,vT)
    a.valu('v_lshrrev_b32',t1,6,vT)
    a.valu('v_readfirstlane_b32',sW,t1)
    a.valu('v_lshrrev_b32',g,4,L)
    a.valu('v_and_b32',n,15,L)
    a.valu('v_lshlrev_b32',vL16,4,L)
    a.salu('s_lshl_b32',sT0,sW,15)
    a.valu('v_add_u32',vWT,sT0,vL16)
    a.valu('v_and_b32',t1,7,L); a.valu('v_xor_b32',t1,t1,g); a.valu('v_lshl_add_u32',t1,g,3,t1)
    a.valu('v_lshlrev_b32',t1,4,t1)
    a.valu('v_add_u32',vMEMr,LMEM,t1)
    a.valu('v_add_u32',vFR,LMEM,vL16)
    a.valu('v_lshrrev_b32',t1,2,L); a.valu('v_lshlrev_b32',t1,4,t1); a.valu('v_and_b32',t2,1,L); a.valu('v_lshl_add_u32',t1,t2,3,t1)
    a.valu('v_add_u32',vQEr,LQE,t1)
    g2=P(7); ct=P(8)
    a.valu('v_and_b32',g2,1,g); a.valu('v_lshrrev_b32',ct,1,g)
    a.valu('v_lshlrev_b32',t1,4,n); a.valu('v_lshl_add_u32',t1,g2,3,t1); a.valu('v_add_u32',vVEr,LVE,t1)
    a.valu('v_lshl_add_u32',t1,ct,8,t1)
    a.salu('s_lshl_b32',sT0,sW,9); a.salu('s_add_u32',sT0,sT0,LQE)
    a.valu('v_add_u32',vQEw,sT0,t1)
    rh=P(9); gg=P(10)
    a.valu('v_lshrrev_b32',u,1,vT); a.valu('v_and_b32',rh,1,vT)
    a.valu('v_bfe_u32',gg,u,2,2)
    a.valu('v_lshlrev_b32',t1,2,rh); a.valu('v_xor_b32',t1,t1,gg); a.valu('v_lshl_add_u32',t1,gg,3,t1)
    a.valu('v_lshlrev_b32',t1,4,t1)
    a.valu('v_lshrrev_b32',t2,4,u); a.valu('v_lshl_add_u32',t2,t2,9,t1)
    a.valu('v_and_b32',t3,3,u); a.valu('v_lshl_add_u32',t2,t3,2,t2)
    a.valu('v_add_u32',vMWA,LMEM,t2)
    a.valu('v_lshrrev_b32',t1,3,n); a.valu('v_lshl_add_u32',t1,ct,1,t1); a.valu('v_lshlrev_b32',t1,12,t1)
    a.valu('v_and_b32',t2,7,n); a.valu('v_lshl_add_u32',t1,t2,4,t1); a.valu('v_lshl_add_u32',vPst,g2,3,t1)
    a.valu('v_cmp_le_u32',sHi,8,n)
    a.valu('v_mov_b32',t1,'0x4444'); a.valu('v_mov_b32',t2,'0xeeee')
    a.valu('v_cndmask_b32',vIdx,t1,t2,sHi)
    a.valu('v_cmp_le_u32','vcc',1,ct); a.valu('v_mov_b32',t1,'0x10000'); a.valu('v_mov_b32',t2,'0xf149f2ca')
    a.valu('v_cndmask_b32',vNEG,t1,t2,'vcc')
    a.salu('s_add_u32',sUnit,sH,48); a.salu('s_cmp_eq_u32',sW,0,ndst=0); a.salu('s_cselect_b32',sUnit,sH,sUnit)
    a.salu('s_add_u32',sT0,sH,32); a.salu('s_cmp_lt_u32',sH,16,ndst=0); a.salu('s_cselect_b32',sT0,sT0,99)
    a.salu('s_cmp_eq_u32',sW,2,ndst=0); a.salu('s_cselect_b32',sUnit,sT0,sUnit)
    a.salu('s_cmp_eq_u32',sW,3,ndst=0); a.salu('s_cselect_b32',sUnit,99,sUnit)
    a.salu('s_lshl_b32',sRSoff,sUnit,12); a.salu('s_add_u32',sRSoff,sRSoff,PB)
    a.salu('s_lshl_b32',sMSToff,sUnit,8); a.salu('s_add_u32',sMSToff,sMSToff,MB)
    a.salu('s_mul_i32',sT0,sW,3*16384); a.salu('s_lshl_b32',sT1,sH,7); a.salu('s_add_u32',sT0,sT0,sT1); a.salu('s_add_u32',sPst[0],sT0,PB)
    for i in range(1,3): a.salu('s_add_u32',sPst[i],sPst[i-1],16384)
    a.salu('s_mul_i32',sT0,sW,2*16384); a.salu('s_add_u32',sT0,sT0,sT1); a.salu('s_add_u32',sPst[3],sT0,PB+12*16384); a.salu('s_add_u32',sPst[4],sPst[3],16384)
    a.salu('s_lshl_b32',sT0,sW,10)
    for i in range(5): a.salu('s_add_u32',sAG[i],sT0,MB+4096*i)
    a.salu('s_lshl_b32',sT1,sW,9); a.salu('s_add_u32',sPubL,sT1,LKE)
    a.salu('s_lshl_b32',sT0,sH,2); a.salu('s_add_u32',sT0,sT0,sW); a.salu('s_lshl_b32',sT0,sT0,15); a.salu('s_add_u32',sSW,sT0,SW)
    for i in range(6): a.salu('s_add_u32',sSWb[i],sSW,4096*i)
    a.salu('s_lshl_b32',sT0,sH,13)
    a.salu('s_add_u32',sKXo,sT0,KX); a.salu('s_add_u32',sVXo,sT0,VX)
    a.salu('s_lshl_b32',sT0,sH,12); a.salu('s_lshl_b32',sT1,sW,9); a.salu('s_add_u32',sT0,sT0,sT1); a.salu('s_add_u32',sKMVo,sT0,KMV-32*4096)
    a.salu('s_mov_b32',sC[0],'0x3e0293ee'); a.salu('s_mov_b32',sC[1],'0x3e0293ee')
    a.salu('s_lshl_b32',sDM[0],sW,11)
    a.salu('s_mov_b32',sStep,0)
    a.salu('s_mov_b32',sBM,'0x10001'); a.salu('s_mov_b32',sMaskP,1); a.salu('s_mov_b32',sPerm,'0x07060302')
    a.salu('s_mov_b32',sTag,2); a.salu('s_mov_b32',sMask,1)

def mk_mst(a):
    a.valu('v_and_b32',vMst,0xfff,vPst); a.valu('v_lshlrev_b32',vMst,1,vMst)
def chain_init_comm(a):
    one=P(0,4)
    a.valu('v_mov_b32',one[0],1); a.valu('v_mov_b32',one[1],1)
    for i in range(5): a.bstore('buffer_store_dwordx2',one[0:2],vPst,sWS,sPst[i],mods='sc1')
    a.salu('s_cmp_ge_u32',sUnit,80,ndst=0); a.branch('s_cbranch_scc1','L_ci_skip')
    for k in range(4): a.valu('v_mov_b32',P(4+k),2)
    mk_mst(a)
    a.bstore('buffer_store_dwordx4',P(4,4),vMst,sWS,sMSToff,mods='sc1')
    a.label('L_ci_skip')

def dma_kv(a):
    for k,(soff,base) in enumerate(((sKXo,LKX),(sVXo,LVX))):
        for hf in range(2):
            a.salu('s_mov_b32','m0',base+4096*hf)
            if hf: a.salu('s_add_u32',sT1,soff,4096)
            for j in range(4):
                a.bload_lds('buffer_load_dwordx4',vL16,sWS,sT1 if hf else soff,off=1024*j,mods='sc1')
def dma_part(a,soff,base,sm0):
    a.salu('s_add_u32','m0',sm0,base); a.salu('s_add_u32',sT1,soff,sm0)
    for j in range(2): a.bload_lds('buffer_load_dwordx4',vL16,sWS,sT1,off=1024*j,mods='sc1')
def spf_kv(a):
    for soff in (sKXo,sVXo):
        a.salu('s_add_u32',sT1,soff,sDM[0])
        for j in range(16):
            a.raw(f"s_buffer_load_dword {sDM[1]}, {sWS}, {sT1} offset:{128*j}" if False else f"s_buffer_load_dword {sDM[1]}, {sWS}, {sT1}",kind='other')
            if j<15: a.salu('s_add_u32',sT1,sT1,128)
def publish(a,tmp):
    if 'nopub' in EXP: return
    a.valu('v_and_b32',vT,0x1f0,vL16); a.valu('v_and_b32',tmp[0],0x200,vL16); a.valu('v_lshl_add_u32',vT,tmp[0],2,vT)
    a.valu('v_add_u32',tmp[0],sPubL,vT)
    a.ds_read('ds_read_b128',tmp,tmp[0])
    a.bstore('buffer_store_dwordx4',tmp,vT,sWS,sKMVo,mods='sc1')
def prefetch_kv(a,tmp):
    if 'nopf' in EXP: return
    a.valu('v_lshlrev_b32',vT,3,vL16)
    a.salu('s_add_u32',sT1,sKXo,32*8192); a.salu('s_add_u32',sT2,sVXo,32*8192)
    a.salu('s_bitcmp0_b32',sW,0,ndst=0); a.salu('s_cselect_b32',sT1,sT1,sT2)
    a.bload('buffer_load_dword',tmp,vT,sWS,sT1,mods='sc1')

def chain_preissue(a,sTicket):
    vq=V(94); t=V(95)
    a.valu('v_lshrrev_b32',t,6,vT); a.valu('v_readfirstlane_b32',sT1,t)
    a.valu('v_bfe_u32',t,vT,2,4); a.valu('v_and_b32',vq,3,vT); a.valu('v_lshlrev_b32',vq,4,vq); a.valu('v_lshl_add_u32',vq,t,13,vq)
    a.salu('s_lshl_b32',sT2,sTicket,8); a.salu('s_lshl_b32',sT4,sT1,15); a.salu('s_lshl_b32',sT1,sT1,6); a.salu('s_add_u32',sT2,sT2,sT1)
    order=[s_ for s_ in ALL_SLABS if s_ not in LDS_SLABS]
    for n in range(7):
        m,ks=order[n]
        for j in range(4):
            a.salu('s_add_u32','m0',sT4,n*4096+j*1024)
            d0=(128*(j//2)+32*ks+16*(j%2)) if ks<4 else ((256+64*(ks-4)+16*j) if ks<6 else (128*(3+j//2)+32*(ks-6)+16*(j%2)))
            a.salu('s_add_u32',sT5,sT2,d0*8192)
            a.bload_lds('buffer_load_dwordx4',vq,{'q':sWq,'k':sWk,'v':sWv}[m],sT5)
def chain_load_weights(a,tk=lambda k:None,pre=None):
    vq=P(0); vo=P(1); ta=P(2); tb=P(3); tc=P(4); L=P(5); gB=P(6); r=P(7); c=P(8); t1=P(9); t2=P(10)
    a.valu('v_and_b32',L,63,vT); a.valu('v_lshrrev_b32',gB,4,L); a.valu('v_bfe_u32',r,L,2,2); a.valu('v_and_b32',c,3,L)
    a.valu('v_lshrrev_b32',t1,2,L); a.valu('v_lshlrev_b32',t2,4,c)
    a.valu('v_lshl_add_u32',vq,t1,13,t2)
    a.salu('s_movk_i32',sT0,1280); a.valu('v_mul_lo_u32',t1,t1,sT0); a.valu('v_add_u32',vo,t1,t2)
    a.salu('s_lshl_b32',sT0,sW,15)
    r0=P(11); r1=P(12); b0=P(13); b1=P(14)
    a.valu('v_and_b32',r0,1,r); a.valu('v_lshrrev_b32',r1,1,r); a.valu('v_and_b32',b0,1,gB); a.valu('v_lshrrev_b32',b1,1,gB)
    cp=P(15)
    a.valu('v_lshlrev_b32',cp,3,c); a.valu('v_lshl_add_u32',cp,r1,5,cp); a.valu('v_add_u32',cp,sT0,cp)
    a.valu('v_lshlrev_b32',t1,5,r0); a.valu('v_lshl_add_u32',t1,b1,2,t1); a.valu('v_lshl_add_u32',t1,b0,1,t1); a.valu('v_lshl_add_u32',ta,t1,6,cp)
    a.valu('v_lshl_add_u32',t1,b0,4,r0); a.valu('v_lshl_add_u32',t1,b1,2,t1); a.valu('v_lshl_add_u32',tc,t1,6,cp)
    a.salu('s_lshl_b32',sT2,sH,8); a.salu('s_lshl_b32',sT1,sW,6); a.salu('s_add_u32',sT2,sT2,sT1)
    a.salu('s_mul_i32',sT3,sH,163840); a.salu('s_mul_i32',sT1,sW,192); a.salu('s_add_u32',S(44),sT3,sT1); a.salu('s_lshl_b32',sT1,sW,7); a.salu('s_add_u32',S(45),sT3,sT1)
    a.salu('s_lshl_b32',sT4,sW,15)
    order=[s for s in ALL_SLABS if s not in LDS_SLABS]
    if 'ord' in EXP: order.sort(key=lambda s_:{'q':0,'o':1,'k':2,'v':3}[s_[0]])
    order+=LDS_SLABS
    def slot_of(n): return (n%8) if n<32 else (n-32)
    def issue(n):
        sl=order[n]; slot=slot_of(n)
        for j in range(4):
            a.salu('s_add_u32','m0',sT4,slot*4096+j*1024)
            if sl[0]=='o':
                _,i,k2=sl
                a.salu('s_add_u32',sT5,S(44) if i<3 else S(45),(64*k2+16*j)*1280+(i*64 if i<3 else 768+(i-3)*64))
                a.bload_lds('buffer_load_dwordx4',vo,sWo,sT5,mods='nt' if 'wnt' in EXP else '')
            else:
                m,ks=sl
                d0=(128*(j//2)+32*ks+16*(j%2)) if ks<4 else ((256+64*(ks-4)+16*j) if ks<6 else (128*(3+j//2)+32*(ks-6)+16*(j%2)))
                a.salu('s_add_u32',sT5,sT2,d0*8192)
                a.bload_lds('buffer_load_dwordx4',vq,{'q':sWq,'k':sWk,'v':sWv}[m],sT5,mods='nt' if 'wnt' in EXP else '')
    tmp=[P(16,8),P(24,8),P(32,8),P(40,8)]
    DEPTH=7
    if pre: a.salu('s_cmp_lg_u32',pre,0,ndst=0); a.branch('s_cbranch_scc1','L_preok')
    for n in range(DEPTH): issue(n)
    if pre: a.label('L_preok')
    pend=[]
    for n in range(DEPTH): pend += [n]*4
    for n in range(len(order)):
        sl=order[n]; slot=slot_of(n)
        last=max(k for k,x in enumerate(pend) if x==n)
        a.wait(vm=min(63,len(pend)-1-last)); pend=pend[last+1:]
        if sl[0]=='o': addr=tc; imm=lambda ip,ct:(32*ct+8*(ip//2)+2*(ip%2))*64
        elif sl[1] in (4,5): addr=tc; imm=lambda ip,ct:(32*ct+8*(ip//2)+2*(ip%2))*64
        else: addr=ta; imm=lambda ip,ct:(16*ct+8*(ip//2)+(ip%2))*64
        dst=[]
        for ct in range(2):
            loc=tile_loc[sl+(ct,)]
            d=loc[1] if loc[0]=='reg' else tmp[(2*n+ct)%4]
            dst.append(d)
            for ip in range(4):
                a.ds_read('ds_read_b64_tr_b16',d[2*ip:2*ip+2],addr,slot*4096+imm(ip,ct))
        a.wait(lgkm=0)
        for ct in range(2):
            loc=tile_loc[sl+(ct,)]
            if loc[0]=='str':
                for hf in range(2):
                    a.salu('s_add_u32',sT5,sSW,loc[1]*2048+hf*1024)
                    a.bstore('buffer_store_dwordx4',dst[ct][4*hf:4*hf+4],vL16,sWS,sT5); pend.append('s')
            elif loc[0]=='lds':
                for hf in range(2):
                    a.ds_write('ds_write_b128',vWT,dst[ct][4*hf:4*hf+4],loc[1]*2048+hf*1024)
        if n+DEPTH<len(order):
            issue(n+DEPTH); pend += [n+DEPTH]*4
        if n in (0,9,19,29,39): tk(3+(n+1)//10)
    a.wait(vm=0,lgkm=0)

def stage_A(a, G):
    t=P(20,4); ad=P(28,4); bd=P(32,4)
    for r in range(4):
        a.valu('v_perm_b32',t[r],G[4+r],G[r],sPerm)
        a.ds_write('ds_write_b32',vMWA if r==0 else ad[r],t[r])
        a.ds_write('ds_write_b16_d16_hi',bd[r],G[8+r])
def stage_B(a, G0, G1):
    for r in range(4): a.valu('v_perm_b32',G0[r],G1[r],G0[r],sPerm)
    for r in range(4):
        if r: a.valu('v_xor_b32',G1[r],16*r,vMWA)
        a.ds_write('ds_write_b32',vMWA if r==0 else G1[r],G0[r],12*512)
def stage_addr(a):
    ad=P(28,4); bd=P(32,4); x=P(36); y=P(37)
    a.valu('v_subrev_u32',x,LMEM,vMWA)
    a.valu('v_and_b32',bd[0],0x1f0,x); a.valu('v_bfe_u32',y,x,2,2); a.valu('v_lshl_add_u32',bd[0],y,1,bd[0])
    a.valu('v_bfe_u32',y,x,9,1); a.valu('v_lshl_add_u32',bd[0],y,3,bd[0])
    a.valu('v_lshrrev_b32',y,10,x); a.valu('v_lshl_add_u32',bd[0],y,9,bd[0]); a.valu('v_add_u32',bd[0],LMEM+8*512,bd[0])
    for r in range(1,4):
        a.valu('v_xor_b32',ad[r],16*r,vMWA); a.valu('v_xor_b32',bd[r],16*r,bd[0])

def stream_load(a,tile,dst):
    if 'nostream' in EXP: return
    idx=tile_loc[tile][1]
    if 'mod' in EXP: idx=idx%int(EXP.split('mod')[1].split('_')[0])
    for hf in range(2):
        a.bload('buffer_load_dwordx4',dst[4*hf:4*hf+4],vL16,sWS,sSWb[idx//2],off=(idx%2)*2048+hf*1024)
def lds_load(a,tile,dst):
    idx=tile_loc[tile][1]
    for hf in range(2): a.ds_read('ds_read_b128',dst[4*hf:4*hf+4],vWT,idx*2048+hf*1024)

def merge_pair(a,D0,D1,out):
    for r in range(4): a.valu('v_permlane32_swap_b32',D0[r],D1[r])
    for r in range(0,4,2): a.valu('v_pk_add_f32',out[r:r+2],D0[r:r+2],D1[r:r+2])
def zero(a,R_):
    for k in range(0,R_.n,2): a.valu('v_mov_b64',R_[k:k+2],0)
def xlane(a,op,x,tmp):
    a.valu('v_mov_b32',tmp,x); a.valu('v_permlane32_swap_b32',x,tmp); a.valu(op,x,x,tmp)
    a.valu('v_mov_b32',tmp,x); a.valu('v_permlane16_swap_b32',x,tmp); a.valu(op,x,x,tmp)

XS=[P(44+8*i,8) for i in range(5)]
def batch1(a):
    for n_ in range(4): stream_load(a,STREAM[n_],XS[n_])
def dma2(a):
    dma_part(a,sKXo,LKX,sDM[0]); dma_part(a,sVXo,LVX,sDM[0])

def chain_loop(a, st, tagname, D1=0, D2=0, fs=lambda a,k:None, post_pub=None, pre_dma=None, prog=None):
    lb=lambda n:f"L_{tagname}_{n}"
    acc={'q':P(0,4),'k':P(4,4),'v':P(8,4)}
    Ar=[P(12+4*i,4) for i in range(4)]; LL=[P(28,8),P(36,8)]; X=XS
    KXo=LKX-LMEM; VXo=LVX-LMEM
    def trfrag(D,base,k4):
        for hh in range(2): a.ds_read('ds_read_b64_tr_b16',D[2*hh:2*hh+2],vQEr,base+512*k4+256*hh)
    a.label(lb('top'))
    zero(a,P(0,12))
    a.wait(lgkm=0); a.barrier()
    fs(a,0)
    for k in range(4): a.ds_read('ds_read_b128',Ar[k],vMEMr,k*512)
    lds_load(a,('q',1,0),LL[0]); lds_load(a,('q',1,1),LL[1])
    nb2=[0]
    def tile_op(m,ka):
        t=(m,ka//2,ka%2); loc=tile_loc[t]
        if loc[0]=='reg': B=loc[1]
        elif loc[0]=='lds': B=LL[ka%2]
        else:
            n_=loc[1]; B=X[n_] if n_<4 else X[n_-4]
        a.smfmac(acc[m],Ar[ka%4],B,vIdx)
        if loc[0]=='lds' and ka+4<20: lds_load(a,('q',(ka+4)//2,ka%2),LL[ka%2])
        if loc[0]=='str' and loc[1]<4: stream_load(a,STREAM[loc[1]+4],X[loc[1]]); nb2[0]+=1
    GB=[P(76,4),P(80,4)]
    for ka in range(20):
        tile_op('q',ka); tile_op('k',ka)
        if ka==6:
            a.wait(vm=4+2*nb2[0]+(1 if post_pub else 0))
            a.valu('v_or_b32',vT,GB[0][0],GB[1][0]); a.valu('v_and_b32',vT,sMask,vT); a.valu('v_cmp_ne_u32','vcc',0,vT)
            a.branch('s_cbranch_vccnz',lb('agb'))
            a.raw(lb('agbok')+':',kind='plabel')
            stage_B(a,GB[0],GB[1])
        if ka<16:
            tile_op('v',ka)
            if ka==7:
                a.wait(lgkm=0); a.barrier()
                stream_load(a,STREAM[8],X[4])
            a.ds_read('ds_read_b128',Ar[ka%4],vMEMr,(ka+4)*512)
        if ka in (0,9,19): fs(a,{0:1,9:2,19:3}[ka])
    KFx={(T,k4):P(28+4*(2*k4+T-1),4) for k4 in range(4) for T in (1,2)}
    def kfx(T,k4): a.ds_read('ds_read_b128',KFx[(T,k4)],vFR,KXo+((T-1)*4+k4)*1024)
    pubq=P(60,4)
    a.valu('v_and_b32',vT,0x1f0,vL16); a.valu('v_and_b32',pubq[0],0x200,vL16); a.valu('v_lshl_add_u32',vT,pubq[0],2,vT)
    a.valu('v_add_u32',pubq[0],sPubL,vT)
    a.ds_read('ds_read_b128',pubq,pubq[0])
    tile_op('v',16)
    a.barrier()
    kfx(1,0); kfx(2,0)
    for m,off in (('q',0),('k',2048)):
        q_=acc[m]
        a.valu('v_cvt_pk_bf16_f32',q_[0],q_[0],q_[1]); a.valu('v_cvt_pk_bf16_f32',q_[1],q_[2],q_[3])
    a.bstore('buffer_store_dwordx4',pubq,vT,sWS,sKMVo,mods='sc1')
    a.ds_write('ds_write_b64',vQEw,acc['q'][0:2],0); a.ds_write('ds_write_b64',vQEw,acc['k'][0:2],2048)
    a.salu('s_add_u32',sKMVo,sKMVo,32*4096)
    kfx(1,1); kfx(2,1); kfx(1,2); kfx(2,2)
    fs(a,4)
    a.wait(lgkm=4); a.barrier()
    fs(a,5)
    QF=[P(0,4),P(4,4),P(60,4),P(64,4)]
    KF0=[Ar[k] for k in range(4)]
    Sacc=[KFx[(1,0)],P(68,4),P(72,4)]
    trfrag(QF[0],0,0); trfrag(QF[1],0,1); trfrag(KF0[0],2048,0)
    tile_op('v',17)
    trfrag(QF[2],0,2); trfrag(KF0[1],2048,1); kfx(1,3); kfx(2,3)
    tile_op('v',18)
    trfrag(QF[3],0,3); trfrag(KF0[2],2048,2)
    tile_op('v',19)
    trfrag(KF0[3],2048,3)
    fs(a,6)
    order=[(T,k4) for k4 in range(4) for T in (1,2)]
    VXF=[KFx[o] for o in order[1:]]+[P(76,4)]
    a.ds_read('ds_read_b128',VXF[7],vFR,VXo+7*1024)
    nvx=0
    v_=acc['v']
    for (T,k4) in order:
        a.mfma('v_mfma_f32_16x16x32_bf16',Sacc[T],KFx[(T,k4)],QF[k4],Sacc[T] if k4 else '0')
        if (T,k4)==(1,0):
            for k in range(4): a.valu('v_mov_b32',Sacc[0][k],vNEG)
        else:
            a.ds_read('ds_read_b128',VXF[nvx],vFR,VXo+nvx*1024)
            nvx+=1
        if (T,k4)==(1,1):
            a.valu('v_cvt_pk_bf16_f32',v_[0],v_[0],v_[1]); a.valu('v_cvt_pk_bf16_f32',v_[1],v_[2],v_[3])
            a.ds_write('ds_write_b64',vQEw,v_[0:2],4096)
    for k4 in range(4): a.mfma('v_mfma_f32_16x16x32_bf16',Sacc[0],KF0[k4],QF[k4],Sacc[0])
    fs(a,7)
    X3=[P(12,8),P(20,8),P(60,8)]
    OS=STREAM[9:]
    Px=P(8,4); Pm=P(80,2); mx=P(80); tm=P(81)
    s_=[Sacc[T][r] for T in range(3) for r in range(4)]
    a.valu('v_max3_f32',mx,s_[4],s_[5],s_[6]); a.valu('v_max3_f32',tm,s_[7],s_[8],s_[9])
    a.valu('v_max3_f32',mx,mx,s_[10],s_[11])
    a.wait(lgkm=0); a.barrier()
    a.salu('s_cmp_eq_u32',sStep,63,ndst=0); a.branch('s_cbranch_scc1',lb('last'))
    VE=[P(0,2),P(2,2),P(4,2),P(6,2),VXF[0][0:2],VXF[0][2:4],VXF[1][0:2],VXF[1][2:4]]
    for et in range(4): a.ds_read('ds_read_b64',VE[et],vVEr,et*256)
    a.valu('v_max3_f32',tm,tm,s_[0],s_[1])
    a.valu('v_max3_f32',mx,mx,s_[2],s_[3]); a.valu('v_max_f32',mx,mx,tm)
    a.valu('v_mov_b32',tm,mx); stream_load(a,OS[0],X3[0]); a.valu('v_permlane32_swap_b32',mx,tm); a.valu('v_max_f32',mx,mx,tm)
    a.valu('v_mov_b32',tm,mx); stream_load(a,OS[1],X3[1]); a.valu('v_permlane16_swap_b32',mx,tm); a.valu('v_max_f32',mx,mx,tm)
    a.valu('v_mul_f32',mx,sC[0],mx)
    for T in range(3):
        for h2 in range(2): a.valu('v_pk_fma_f32',Sacc[T][2*h2:2*h2+2],Sacc[T][2*h2:2*h2+2],sC,P(80,2),mods='op_sel_hi:[1,1,0] neg_lo:[0,0,1] neg_hi:[0,0,1]')
    for x in s_: a.valu('v_exp_f32',x,x)
    sm=Px[0:2]; rs=Px[2:4]
    a.valu('v_pk_add_f32',sm,Sacc[0][0:2],Sacc[0][2:4])
    for T in (1,2):
        a.valu('v_pk_add_f32',sm,sm,Sacc[T][0:2]); a.valu('v_pk_add_f32',sm,sm,Sacc[T][2:4])
    a.valu('v_add_f32',sm[0],sm[0],sm[1])
    a.valu('v_mov_b32',tm,sm[0]); stream_load(a,OS[2],X3[2]); a.valu('v_permlane32_swap_b32',sm[0],tm); a.valu('v_add_f32',sm[0],sm[0],tm)
    a.valu('v_mov_b32',tm,sm[0]); a.valu('v_permlane16_swap_b32',sm[0],tm); a.valu('v_add_f32',sm[0],sm[0],tm)
    a.valu('v_rcp_f32',rs[0],sm[0])
    for T in (1,2,0):
        for h2 in range(2): a.valu('v_pk_mul_f32',Sacc[T][2*h2:2*h2+2],Sacc[T][2*h2:2*h2+2],rs,mods='op_sel_hi:[1,0]')
    for T,o in ((1,0),(2,2)):
        for h2 in range(2): a.valu('v_cvt_pk_bf16_f32',Px[o+h2],Sacc[T][2*h2],Sacc[T][2*h2+1])
    for h2 in range(2): a.valu('v_cvt_pk_bf16_f32',Pm[h2],Sacc[0][2*h2],Sacc[0][2*h2+1])
    fs(a,8)
    O=[Sacc[1],Sacc[2],Sacc[0]]+[VXF[k] for k in range(2,7)]
    for et in range(8):
        a.mfma('v_mfma_f32_16x16x32_bf16',O[et],VXF[et],Px,'0')
        if et<2:
            a.ds_read('ds_read_b64',VE[4+2*et],vVEr,(4+2*et)*256); a.ds_read('ds_read_b64',VE[5+2*et],vVEr,(5+2*et)*256)
    fs(a,9)
    def cvt(et):
        d=O[et&~1]; o=2*(et&1)
        a.valu('v_cvt_pk_bf16_f32',d[o],O[et][0],O[et][1]); a.valu('v_cvt_pk_bf16_f32',d[o+1],O[et][2],O[et][3])
    A2=[O[0],O[2],O[4],O[6]]
    oacc=[Px,O[1],O[3],O[5],O[7]]
    LO=[P(0,8),R('v',VXF[0].i,8)]
    for et in range(8):
        a.mfma('v_mfma_f32_16x16x16_bf16',O[et],VE[et],Pm,O[et])
        if et==0: zero(a,Px)
        if et>=3: cvt(et-3)
        if et==4: lds_load(a,('o',1,0,0),LO[0])
    lds_load(a,('o',1,0,1),LO[1])
    fs(a,10)
    def fin(i):
        c=oacc[i]
        a.valu('v_cvt_pk_bf16_f32',c[0],c[0],c[1]); a.valu('v_cvt_pk_bf16_f32',c[1],c[2],c[3])
        a.valu('v_bfi_b32',c[0],sBM,vNEG,c[0])
        a.bstore('buffer_store_dwordx2',c[0:2],vPst,sWS,sPst[i],mods=st)
    for i in range(5):
        for k2 in range(2):
            for c2 in range(2):
                t=('o',i,k2,c2); loc=tile_loc[t]
                B=loc[1] if loc[0]=='reg' else (LO[c2] if loc[0]=='lds' else X3[OS.index(t)])
                a.smfmac(oacc[i],A2[2*k2+c2],B,vIdx)
                if loc[0]=='lds' and i+1<=3: lds_load(a,('o',i+1,0,c2),LO[c2])
                n_=2*k2+c2
                if i==0:
                    if n_==0: cvt(5)
                    if n_==1: cvt(6); cvt(7)
                    if n_==2: zero(a,O[1])
                    if n_==3: zero(a,O[3])
                if i==1 and n_==0: zero(a,O[5])
                if i==1 and n_==1: zero(a,O[7])
                if i>=1 and n_==2: fin(i-1)
    fin(4)
    fs(a,11)
    a.salu('s_add_u32',sStep,sStep,1)
    a.salu('s_add_u32',sKXo,sKXo,32*8192); a.salu('s_add_u32',sVXo,sVXo,32*8192)
    a.valu('v_xor_b32',vNEG,sBM,vNEG)
    a.salu('s_cmp_ge_u32',sUnit,80,ndst=0); a.branch('s_cbranch_scc1',lb('ag0'))
    if 'b1late' not in EXP: batch1(a)
    Sel=P(20,4); m_=P(24); one=P(25)
    mk_mst(a)
    a.valu('v_lshrrev_b32',m_,4,vL16); a.valu('v_and_b32',m_,15,m_)
    a.valu('v_and_b32',one,1,m_); a.valu('v_lshlrev_b32',one,4,one)
    a.valu('v_mov_b32',P(26),'0x3f80'); a.valu('v_lshlrev_b32',one,one,P(26))
    a.valu('v_lshrrev_b32',m_,1,m_)
    for k in range(4):
        a.valu('v_cmp_eq_u32','vcc',k,m_); a.valu('v_cndmask_b32',Sel[k],0,one,'vcc')
    if D1: a.raw(f"s_sleep {D1}")
    G=[P(4*i,4) for i in range(4)]
    a.label(lb('rs'))
    guard(a)
    if 'cnt' in EXP: a.salu('s_add_u32',S(4),S(4),1)
    for i in range(4): a.bload('buffer_load_dwordx4',G[i],vL16,sWS,sRSoff,off=1024*i,mods='sc1')
    x=P(38); D=P(16,4)
    a.valu('v_or3_b32',x,G[0][0],G[0][2],G[1][0]); a.valu('v_or3_b32',x,x,G[1][2],G[2][0])
    a.valu('v_or3_b32',x,x,G[2][2],G[3][0]); a.valu('v_or_b32',x,x,G[3][2])
    a.valu('v_and_b32',x,sMaskP,x); a.valu('v_cmp_ne_u32','vcc',0,x)
    for i in range(4): a.mfma('v_mfma_f32_16x16x32_bf16',D,Sel,G[i],D if i else '0')
    a.branch('s_cbranch_vccnz',lb('rs'))
    for k in range(4): a.valu('v_add_f32',D[k],D[k],D[k],mods='row_ror:8 row_mask:0xf bank_mask:0xf')
    for k in range(4): a.valu('v_cvt_pk_bf16_f32',D[k],0,D[k])
    a.valu('v_or_b32',D[0],sMask,D[0])
    a.salu('s_mov_b64','exec','0x00ff00ff')
    a.bstore('buffer_store_dwordx4',D,vMst,sWS,sMSToff,mods=st)
    a.salu('s_mov_b64','exec',-1)
    fs(a,12)
    a.salu('s_mov_b32',sT0,sTag); a.salu('s_mov_b32',sTag,sMask); a.salu('s_mov_b32',sMask,sT0)
    a.salu('s_xor_b32',sMaskP,sMaskP,sBM)
    stage_addr(a)
    if 'b1late' in EXP: batch1(a)
    if D2: a.raw(f"s_sleep {D2}")
    a.branch('s_branch',lb('ag'))
    a.label(lb('ag0'))
    a.salu('s_mov_b32',sT0,sTag); a.salu('s_mov_b32',sTag,sMask); a.salu('s_mov_b32',sMask,sT0)
    a.salu('s_xor_b32',sMaskP,sMaskP,sBM)
    stage_addr(a)
    if prog: prog(a)
    a.raw(f"s_sleep {D1+int(os.environ.get('XS1','2'))}")
    batch1(a)
    if D2+int(os.environ.get('XS2','11')): a.raw(f"s_sleep {D2+int(os.environ.get('XS2','11'))}")
    BK=int(os.environ.get('BK','0'))
    if BK:
        a.branch('s_branch',lb('ag'))
        a.label(lb('agr')); a.raw(f"s_sleep {BK}")
    a.label(lb('ag'))
    guard(a)
    if 'cnt' in EXP: a.salu('s_add_u32',S(5),S(5),1)
    G=P(0,12)
    for i in range(3): a.bload('buffer_load_dwordx4',G[4*i:4*i+4],vL16,sWS,sAG[i],mods='sc1')
    x=P(40)
    a.valu('v_or3_b32',x,G[0],G[4],G[8])
    a.valu('v_and_b32',x,sMask,x); a.valu('v_cmp_ne_u32','vcc',0,x)
    a.branch('s_cbranch_vccnz',lb('agr') if BK else lb('ag'))
    fs(a,13)
    for i in range(2): a.bload('buffer_load_dwordx4',GB[i],vL16,sWS,sAG[3+i],mods='sc1')
    stage_A(a,G)
    dma2(a)
    if post_pub: post_pub(a)
    a.branch('s_branch',lb('top'))
    a.label(lb('agb'))
    guard(a)
    for i in range(2): a.bload('buffer_load_dwordx4',GB[i],vL16,sWS,sAG[3+i],mods='sc1')
    a.wait(vm=0)
    a.valu('v_or_b32',vT,GB[0][0],GB[1][0]); a.valu('v_and_b32',vT,sMask,vT); a.valu('v_cmp_ne_u32','vcc',0,vT)
    a.branch('s_cbranch_vccnz',lb('agb'))
    a.nop(4)
    a.branch('s_branch',lb('agbok'))
    a.label(lb('last'))
    publish(a,P(76,4))
    a.label(lb('exit'))

def chain_first(a,pre_dma=None):
    G=P(0,12); GB=[P(76,4),P(80,4)]; u=P(64); rh=P(65); off=P(66)
    a.valu('v_lshrrev_b32',u,1,vT); a.valu('v_and_b32',rh,1,vT)
    a.salu('s_movk_i32',sT0,4*1280); a.valu('v_mul_lo_u32',off,rh,sT0); a.valu('v_lshl_add_u32',off,u,1,off)
    regs=[G[k] for k in range(12)]+[GB[0][k] for k in range(4)]+[GB[1][k] for k in range(4)]
    for r_ in regs: a.valu('v_mov_b32',r_,0)
    for r in range(4):
        a.salu('s_movk_i32',sT1,r*1280)
        for i in range(5):
            a.bload('buffer_load_short_d16_hi',regs[4*i+r],off,sM0,sT1,off=i*256).rd |= set(regs[4*i+r].regs())
    batch1(a)
    a.wait(vm=0)
    stage_addr(a)
    stage_A(a,G)
    dma2(a)
    if pre_dma: pre_dma(a)
```

```python
import sys
from par import *
KN='recurrent_scan__memory_aug_recurrent_mem_tr__dense_activation_squared_relu__prompt_kernel'
D1,D2=0,2
a=Asm()
TK=os.environ.get('TK','')=='1'
def tk(k):
    if TK: a.raw(f"s_memrealtime s[{[98,100,48,50,8,10,20,22][k]}:{[98,100,48,50,8,10,20,22][k]+1}]",kind='other')
NICW=int(os.environ.get('NICW','6'))
PROF=os.environ.get('PROF','')=='1'
def prof(dw,op='buffer_atomic_umax',vr=(V(20),V(21))):
    if not PROF: return
    a.raw("s_memrealtime s[98:99]",wr=['s98','s99'],kind='smem'); a.wait(lgkm=0)
    a.valu('v_mov_b32',vr[0],S(98)); a.valu('v_mov_b32',vr[1],4*dw)
    a.salu('s_mov_b64','exec',1)
    a.batomic(op,vr[0],vr[1],sDBG,'0',mods='sc1')
    a.salu('s_mov_b64','exec',-1)
a.label(KN)
a.salu('s_cmp_ge_u32',S(2),256,ndst=0); a.branch('s_cbranch_scc1','L_end')
if 'icw' in EXP:
    a.raw("s_getpc_b64 s[4:5]",wr=['s4','s5'],kind='salu')
    a.valu('v_lshlrev_b32',V(1),6,vT)
    for k in range(NICW):
        a.raw(f"global_load_dword v2, v1, s[4:5]",rd=['v1','s4','s5'],kind='vmstore')
        a.valu('v_add_u32',V(1),16384,V(1))
load_srds(a)
a.salu('s_mov_b32',S(101),0)
a.raw("s_getreg_b32 s3, hwreg(HW_REG_XCC_ID)",wr=['s3'],kind='salu')
a.salu('s_and_b32',S(3),S(3),15)
t=V(12); z=V(13); sv=S(4,2)
def bcast_atomic(off,val,dst,srd=sWS):
    a.valu('v_mov_b32',t,val); a.valu('v_mov_b32',z,off)
    a.valu('v_cmp_eq_u32','vcc',0,vT); a.salu('s_and_saveexec_b64',sv,'vcc')
    lbl=f'L_ba{len(a.ins)}'
    a.branch('s_cbranch_execz',lbl)
    a.batomic('buffer_atomic_add',t,z,srd,'0',ret=True,mods='sc1')
    a.wait(vm=0)
    a.valu('v_mov_b32',z,163832); a.ds_write('ds_write_b32',z,t)
    a.label(lbl)
    a.salu('s_mov_b64','exec',sv)
    a.wait(lgkm=0); a.barrier()
    a.valu('v_mov_b32',z,163832); a.ds_read('ds_read_b32',t,z); a.wait(lgkm=0)
    a.valu('v_readfirstlane_b32',dst,t)
    a.barrier()
tk(0)
prof(55)
par_setup(a)
a.salu('s_cmp_lg_u32',S(2),0,ndst=0); a.branch('s_cbranch_scc1','L_nz')
for k in range(4): a.valu('v_mov_b32',V(12+k),0)
a.valu('v_lshlrev_b32',V(16),4,vT); a.salu('s_mov_b32',sA,FL)
for k in range(NFLG*128//4096): a.bstore('buffer_store_dwordx4',V(12,4),V(16),sWS,sA,mods='sc1'); a.salu('s_add_u32',sA,sA,4096)
a.wait(vm=0); a.barrier()
a.valu('v_mov_b32',V(12),1); a.valu('v_mov_b32',V(13),128)
a.bstore('buffer_store_dword',V(12),V(13),sDBG,'0',mods='sc1')
a.label('L_nz')
a.salu('s_mov_b32',S(7),99); a.salu('s_mov_b32',S(100),0)
if 'anyx' in EXP: pass
elif 'fewx' in EXP:
    a.salu('s_cmp_lg_u32',S(3),0,ndst=0); a.branch('s_cbranch_scc1','L_ln')
    a.salu('s_cmp_ge_u32',S(2),128,ndst=0); a.branch('s_cbranch_scc1','L_ln')
else:
    a.salu('s_cmp_lg_u32',S(3),0,ndst=0); a.branch('s_cbranch_scc1','L_ln')
bcast_atomic(0,1,S(7),sDBG)
a.label('L_ln')
a.salu('s_mov_b32',sI,S(2)); task_ln(a)
a.salu('s_cmp_lg_u32',sWv_,0,ndst=0); a.branch('s_cbranch_scc1','L_fr1')
a.valu('v_mov_b32',V(13),128)
a.label('L_fr')
guard(a)
a.bload('buffer_load_dword',V(12),V(13),sDBG,'0',mods='sc1')
a.valu('v_cmp_eq_u32','vcc',0,V(12)); a.branch('s_cbranch_vccnz','L_fr')
a.label('L_fr1')
a.salu('s_lshr_b32',sRB,S(2),4); rb_off(a,sD); signal(a,sD,1<<F_LN)
a.barrier()
a.salu('s_mov_b32',sH,S(7))
a.salu('s_cmp_lt_u32',sH,32,ndst=0); a.branch('s_cbranch_scc1','L_chain')
a.label('L_par')
par_setup(a)
a.salu('s_add_u32',S(96),S(3),6); a.salu('s_mul_hi_u32',sA,S(96),'0x24924925'); a.salu('s_mul_i32',sA,sA,7); a.salu('s_sub_u32',S(96),S(96),sA); a.salu('s_mov_b32',S(97),0)
if 'warm' in EXP:
    a.valu('v_lshlrev_b32',V(16),4,vT); a.salu('s_mul_i32',sA,S(2),20480)
    for srd in (sWq,sWk,sWv,sWo):
        for k in range(5):
            a.salu('s_add_u32',sB,sA,4096*k); a.bload('buffer_load_dwordx4',V(220+4*(k%2),4),V(16),srd,sB,mods='nt').wr=set()
a.branch('s_branch','L_deq')
a.label('L_next')
a.valu('v_mov_b32',z,0)
a.salu('s_cmp_lg_u32',sWv_,0,ndst=0); a.branch('s_cbranch_scc1','L_fb0')
a.bload('buffer_load_dword',t,z,sDBG,'0',mods='sc1')
a.valu('v_mov_b32',z,163828); a.ds_write('ds_write_b32',z,t)
a.label('L_fb0')
a.wait(lgkm=0); a.barrier()
a.valu('v_mov_b32',z,163828); a.ds_read('ds_read_b32',t,z); a.wait(lgkm=0); a.valu('v_readfirstlane_b32',sA,t)
a.salu('s_cmp_ge_u32',sA,32,ndst=0); a.branch('s_cbranch_scc1','L_deq')
bcast_atomic(0,1,sH,sDBG)
a.salu('s_cmp_lt_u32',sH,32,ndst=0); a.branch('s_cbranch_scc1','L_chain')
par_setup(a)
a.label('L_deq')
sQ=S(96); sPh=S(97)
a.salu('s_cmp_lg_u32',sPh,0,ndst=0); a.branch('s_cbranch_scc1','L_phB')
a.label('L_qtry')
a.salu('s_lshl_b32',sA,sQ,7); a.salu('s_add_u32',sA,sA,O_Q)
bcast_atomic(sA,1,sTask)
a.salu('s_cmp_lt_u32',sTask,64,ndst=0); a.branch('s_cbranch_scc1','L_qgot')
a.valu('v_lshlrev_b32',z,7,pLane); a.valu('v_mov_b32',t,64)
a.salu('s_mov_b32',sA,O_Q); a.salu('s_mov_b64','exec',0x7f)
a.bload('buffer_load_dword',t,z,sWS,sA,mods='sc1').rd.add('v12')
a.salu('s_mov_b64','exec',-1)
a.valu('v_cmp_gt_u32','vcc',64,t)
a.salu('s_and_b32',sA,'vcc_lo',0x7f)
a.valu('v_mov_b32',t,sA); a.valu('v_mov_b32',z,163828)
a.salu('s_cmp_lg_u32',sWv_,0,ndst=0); a.branch('s_cbranch_scc1','L_q1')
a.ds_write('ds_write_b32',z,t)
a.label('L_q1')
a.wait(lgkm=0); a.barrier()
a.ds_read('ds_read_b32',t,z); a.wait(lgkm=0); a.valu('v_readfirstlane_b32',sA,t); a.barrier()
a.salu('s_cmp_eq_u32',sA,0,ndst=0); a.branch('s_cbranch_scc1','L_toB')
a.salu('s_ff1_i32_b32',sQ,sA)
a.branch('s_branch','L_qtry')
a.label('L_toB')
a.salu('s_mov_b32',sPh,1); a.branch('s_branch','L_phB')
a.label('L_qgot')
a.salu('s_cmp_lt_u32',sQ,2,ndst=0); a.branch('s_cbranch_scc0','L_d2')
a.salu('s_cmp_lt_u32',sTask,48,ndst=0); a.branch('s_cbranch_scc0','L_d1o')
a.salu('s_mul_hi_u32',sRB,sTask,'0x55555556'); a.salu('s_mul_i32',sB,sRB,3); a.salu('s_sub_u32',sB,sTask,sB); a.branch('s_branch','L_dkv')
a.label('L_d1o')
a.salu('s_sub_u32',sRB,sTask,48); a.salu('s_mov_b32',sA,sQ); a.branch('s_branch','L_doth')
a.label('L_d2')
a.salu('s_cmp_lt_u32',sTask,32,ndst=0); a.branch('s_cbranch_scc0','L_d2o')
a.salu('s_lshr_b32',sRB,sTask,1); a.salu('s_and_b32',sB,sTask,1); a.branch('s_branch','L_dkv')
a.label('L_d2o')
a.salu('s_sub_u32',sB,sTask,32); a.salu('s_lshr_b32',sRB,sB,1); a.salu('s_and_b32',sB,sB,1)
a.salu('s_lshl_b32',sA,sQ,1); a.salu('s_sub_u32',sA,sA,2); a.salu('s_add_u32',sA,sA,sB); a.branch('s_branch','L_doth')
a.label('L_dkv')
if 'thr' in EXP:
    n=int(EXP.split('thr')[1].split('_')[0])
    a.salu('s_cmp_lt_u32',sRB,2,ndst=0); a.branch('s_cbranch_scc1','L_nothr')
    a.salu('s_cmp_ge_u32',sTask,32,ndst=0); a.branch('s_cbranch_scc1','L_nothr')
    for k in range(n): a.raw('s_sleep 127')
    a.label('L_nothr')
a.salu('s_mul_i32',sA,sB,7); a.salu('s_add_u32',sA,sA,sQ)
a.salu('s_and_b32',sB,sA,7); a.salu('s_lshl_b32',sB,sB,2); a.salu('s_add_u32',sJ,sB,sWv_)
a.salu('s_cmp_ge_u32',sA,8,ndst=0); a.branch('s_cbranch_scc1','L_tv')
task_kq(a,'gk',sWk,KX,F_KV); prof(61); a.branch('s_branch','L_next')
a.label('L_tv'); task_v(a); a.branch('s_branch','L_next')
a.label('L_doth')
a.salu('s_and_b32',sB,sA,7); a.salu('s_lshl_b32',sB,sB,2); a.salu('s_add_u32',sJ,sB,sWv_)
a.salu('s_cmp_ge_u32',sA,8,ndst=0); a.branch('s_cbranch_scc1','L_tf')
task_kq(a,'gq',sWq,QX,F_Q); a.branch('s_branch','L_next')
a.label('L_tf'); task_f1(a); prof(62); a.branch('s_branch','L_next')
a.label('L_phB')
bcast_atomic(O_TASK,1,sTask)
a.salu('s_cmp_lt_u32',sTask,66*18,ndst=0); a.branch('s_cbranch_scc0','L_end')
a.salu('s_mul_hi_u32',sI,sTask,'0x0e38e38f'); a.salu('s_mul_i32',sB,sI,18); a.salu('s_sub_u32',sA,sTask,sB)
a.salu('s_cmp_ge_u32',sA,8,ndst=0); a.branch('s_cbranch_scc1','L_tfin')
a.salu('s_cmp_ge_u32',sI,64,ndst=0); a.branch('s_cbranch_scc1','L_next')
a.salu('s_lshl_b32',sB,sA,2); a.salu('s_add_u32',sJ,sB,sWv_)
task_at(a); prof(63); a.branch('s_branch','L_next')
a.label('L_tfin')
a.salu('s_cmp_lt_u32',sI,2,ndst=0); a.branch('s_cbranch_scc1','L_next')
a.salu('s_sub_u32',sI,sI,2); a.salu('s_sub_u32',sJ,sA,8)
task_fin(a); prof(60); a.branch('s_branch','L_next')
a.label('L_chain')
tk(1)
prof(56)
chain_setup(a)
chain_init_comm(a)
a.wait(vm=0); a.barrier()
a.salu('s_lshl_b32',sT0,1,S(3))
a.valu('v_mov_b32',P(0),sT0); a.valu('v_mov_b32',P(1),O_CHBAR+4); a.valu('v_mov_b32',P(2),1); a.valu('v_mov_b32',P(3),O_CHBAR)
a.salu('s_cmp_lg_u32',sW,0,ndst=0); a.branch('s_cbranch_scc1','L_ch0')
a.salu('s_mov_b64','exec',1)
a.batomic('buffer_atomic_or',P(0),P(1),sWS,'0',mods='sc1'); a.wait(vm=0)
a.batomic('buffer_atomic_add',P(2),P(3),sWS,'0',mods='sc1')
a.salu('s_mov_b64','exec',-1)
a.label('L_ch0')
tk(2)
chain_load_weights(a,tk)
prof(57,vr=(P(70),P(71)))
cuid=[0]
sKVm=S(47)
a.salu('s_mov_b32',sKVm,0)
def kv_wait(a,first=False):
    cuid[0]+=1; l=f'L_kvw{cuid[0]}'
    if first: a.salu('s_mov_b32',sT0,0)
    else:
        a.salu('s_add_u32',sT0,sStep,1); a.salu('s_and_b32',sT1,sT0,3); a.salu('s_cmp_lg_u32',sT1,0,ndst=0); a.branch('s_cbranch_scc1',l+'d')
        a.salu('s_cmp_ge_u32',sT0,64,ndst=0); a.branch('s_cbranch_scc1',l+'d')
        a.salu('s_lshr_b32',sT0,sT0,2)
    a.salu('s_mov_b32',sT1,O_RB)
    a.valu('v_and_b32',P(41),0xf0,vL16); a.valu('v_lshlrev_b32',P(41),3,P(41))
    a.label(l)
    guard(a)
    a.salu('s_bitcmp1_b32',sKVm,sT0,ndst=0); a.branch('s_cbranch_scc1',l+'d')
    a.bload('buffer_load_dword',P(40),P(41),sWS,sT1,mods='sc1')
    a.valu('v_bfe_u32',P(40),P(40),F_KV,6); a.valu('v_cmp_le_u32','vcc',16,P(40))
    a.salu('s_and_b32',sKVm,'vcc_lo',0xffff)
    a.salu('s_bitcmp1_b32',sKVm,sT0,ndst=0); a.branch('s_cbranch_scc1',l+'d')
    a.raw('s_sleep 4'); a.branch('s_branch',l)
    a.label(l+'d')
kv_wait(a,True)
a.valu('v_mov_b32',P(4),O_CHBAR)
a.label('L_arr')
guard(a)
a.bload('buffer_load_dwordx2',P(0,2),P(4),sWS,'0',mods='sc1')
a.valu('v_cmp_gt_u32','vcc',32,P(0))
a.branch('s_cbranch_vccnz','L_arr')
a.valu('v_readfirstlane_b32',S(6),P(1))
sPG=S(46)
a.salu('s_lshl_b32',sT0,sH,2); a.salu('s_add_u32',sT0,sT0,sW); a.salu('s_lshl_b32',sT1,sT0,7); a.salu('s_add_u32',sT1,sT1,FL+0x8000)
a.salu('s_cmp_eq_u32',sT0,3,ndst=0); a.salu('s_cselect_b32',sPG,O_PROG,sT1)
def post_pub(a):
    a.salu('s_sub_u32',sT0,sStep,2); a.valu('v_mov_b32',P(24),sT0); a.valu('v_mov_b32',P(25),0)
    a.salu('s_mov_b64','exec',1)
    a.bstore('buffer_store_dword',P(24),P(25),sWS,sPG,mods='sc1')
    a.salu('s_mov_b64','exec',-1)
chain_first(a,post_pub)
if TK:
    a.raw("s_memrealtime s[96:97]",kind='other'); a.wait(lgkm=0)
    a.salu('s_cmp_lg_u32',sH,5,ndst=0); a.branch('s_cbranch_scc1','L_tkx')
    a.valu('v_mov_b32',P(41),160)
    for k,r in enumerate([98,100,48,50,8,10,20,22,96]):
        a.valu('v_mov_b32',P(40),S(r)); a.bstore('buffer_store_dword',P(40),P(41),sDBG,'0',off=4*k)
    a.wait(vm=4)
    a.label('L_tkx')
prof(58,vr=(P(40),P(41)))
def prog(a):
    cuid[0]+=1; l=f'L_pg{cuid[0]}'
    a.salu('s_cmp_lg_u32',sW,3,ndst=0); a.branch('s_cbranch_scc1',l+'e')
    kv_wait(a)
    a.label(l+'e')
a.salu('s_bcnt1_i32_b32',sT0,S(6)); a.salu('s_cmp_lg_u32',sT0,1,ndst=0); a.branch('s_cbranch_scc1','L_slow')
chain_loop(a,'','f',D1,D2,prog=prog,post_pub=post_pub)
a.branch('s_branch','L_chend')
a.label('L_slow')
chain_loop(a,'sc1','s',D1,D2,prog=prog,post_pub=post_pub)
a.label('L_chend')
prof(59,vr=(P(70),P(71)))
a.wait(vm=0); a.barrier()
a.salu('s_cmp_lg_u32',sW,0,ndst=0); a.branch('s_cbranch_scc1','L_end')
a.valu('v_mov_b32',P(0),1); a.valu('v_mov_b32',P(1),O_PROG+4)
a.salu('s_mov_b64','exec',1)
a.batomic('buffer_atomic_add',P(0),P(1),sWS,'0',mods='sc1')
a.label('L_end')
a.raw('s_endpgm')
a.auto_wait(); a.hazards()
ref=open('recurrent_scan__memory_aug_recurrent_mem_tr__dense_activation_squared_relu__prompt.s.ref').read()
hdr=ref[:ref.index('; Override launch geometry')]+f"""; @launch grid=(256,1,1) block=(256,1,1) lds=163840
.amdgcn_target "amdgcn-amd-amdhsa--gfx950"
.text
.globl {KN}
.type {KN},@function
.p2align 8
"""
ftr=f"""
.section .rodata,"a"
.p2align 6
.amdhsa_kernel {KN}
  .amdhsa_next_free_vgpr 512
  .amdhsa_next_free_sgpr 102
  .amdhsa_accum_offset 256
  .amdhsa_group_segment_fixed_size 0
  .amdhsa_kernarg_size 120
  .amdhsa_user_sgpr_count 2
  .amdhsa_user_sgpr_kernarg_segment_ptr 1
  .amdhsa_system_sgpr_workgroup_id_x 1
.end_amdhsa_kernel
"""
out=sys.argv[1] if len(sys.argv)>1 else 'recurrent_scan__memory_aug_recurrent_mem_tr__dense_activation_squared_relu__prompt.s'
open(out,'w').write(hdr+a.text()+ftr)
print(len(a.ins),'instructions')
```
